```python
import torch

def _softmax(x, axis=-1):
    return torch.softmax(x, dim=axis)
def _gelu(x):
    return torch.nn.functional.gelu(x, approximate="tanh")
def _silu(x):
    return torch.nn.functional.silu(x)
def _sigmoid(x):
    return torch.sigmoid(x)
def _layernorm(x, axis=-1, eps=1e-5):
    m = x.mean(dim=axis, keepdim=True)
    v = x.var(dim=axis, keepdim=True, unbiased=False)
    return (x - m) / torch.sqrt(v + eps)
def _scatter_add(tgt, idx, src, axis=0):
    return tgt.clone().index_add_(axis, idx, src)
def _segment_sum(src, seg, n):
    out = torch.zeros((n,) + src.shape[1:], dtype=src.dtype)
    return out.index_add_(0, seg, src)
def _pad(x, pw):
    flat = tuple(v for pair in reversed(pw) for v in pair)
    return torch.nn.functional.pad(x, flat)

kernel_name = 'standalone__modern_conv_block_slak__vision'

def setup_inputs():

    _w = (lambda a: (lambda t: t.to(torch.bfloat16) if t.is_floating_point() else t)(torch.as_tensor(a)))
    H = W = 512
    C = 96
    K = 3
    return {
        "x": _w((lambda *s: torch.randn(*s, dtype=torch.bfloat16) * 0.05)(1, H, W, C)),
        "dw": _w((lambda *s: torch.randn(*s, dtype=torch.bfloat16) * 0.05)(K, K, C)),
        "w1": _w((lambda *s: torch.randn(*s, dtype=torch.bfloat16) * 0.05)(C, 4 * C)),
        "w2": _w((lambda *s: torch.randn(*s, dtype=torch.bfloat16) * 0.05)(4 * C, C)),
        "grn_g": _w((lambda *s: torch.randn(*s, dtype=torch.bfloat16) * 0.05)(4 * C)),
        "grn_b": _w((lambda *s: torch.randn(*s, dtype=torch.bfloat16) * 0.05)(4 * C)),
    }

def reference(x, dw, w1, w2, grn_g, grn_b):
    B, H, W, C = x.shape
    K = dw.shape[0]
    pad = K // 2
    xp = _pad(x, ((0,0),(pad,pad),(pad,pad),(0,0)))
    out = torch.zeros_like(x)
    for i in range(K):
        for j in range(K):
            out = out + xp[:, i:i+H, j:j+W, :] * dw[i, j][None, None, None, :]
    h = _layernorm(out, axis=-1)
    h = _gelu(h @ w1)
    gx = torch.sqrt((h * h).sum(axis=(1, 2), keepdims=True) + 1e-6)
    nx = gx / (gx.mean(axis=-1, keepdims=True) + 1e-6)
    h = grn_g[None, None, None, :] * (h * nx) + grn_b[None, None, None, :] + h
    return x + h @ w2
```

```python
import re

REG_RE = re.compile(r"^(-|\|)?\|?([vas])(\d+)\|?$")
RNG_RE = re.compile(r"^(-|\|)?\|?([vas])\[(\d+):(\d+)\]\|?$")


def regs_of(tok):
    tok = tok.strip()
    if tok.startswith("abs(") or tok.startswith("-abs("):
        tok = tok[tok.index("(") + 1:-1]
    m = REG_RE.match(tok)
    if m:
        return [(m.group(2), int(m.group(3)))]
    m = RNG_RE.match(tok)
    if m:
        return [(m.group(2), i) for i in range(int(m.group(3)), int(m.group(4)) + 1)]
    if tok == "vcc":
        return [("s", "vcc")]
    if tok == "m0":
        return [("s", "m0")]
    if tok == "exec":
        return [("s", "exec")]
    return []


TRANS = ("v_exp_", "v_rcp_", "v_rsq_", "v_sqrt_", "v_log_")
WINDOW = ("v_pk_add_f32", "v_pk_mul_f32", "v_pk_fma_f32", "v_dot2")
RMW = ("v_fmac_", "v_dot2c_", "v_pk_fmac")
VOP12 = ("v_mov_b32", "v_add_f32", "v_sub_f32", "v_subrev_f32", "v_mul_f32", "v_fmac_f32", "v_max_f32", "v_min_f32",
         "v_and_b32", "v_or_b32", "v_xor_b32", "v_lshlrev_b32", "v_lshrrev_b32", "v_ashrrev_i32", "v_add_u32",
         "v_sub_u32", "v_subrev_u32", "v_exp_f32", "v_rcp_f32", "v_rsq_f32", "v_sqrt_f32", "v_exp_f16", "v_rcp_f16",
         "v_dot2c_f32_f16", "v_dot2c_f32_bf16", "v_permlane32_swap_b32", "v_mul_u32_u24", "v_readfirstlane_b32",
         "v_cndmask_b32", "v_min_u32", "v_max_u32", "v_cvt_f32_u32", "v_cvt_f32_f16", "v_cvt_f16_f32", "v_log_f32")
INLINE = {"0", "0.5", "-0.5", "1.0", "-1.0", "2.0", "-2.0", "4.0", "-4.0"} | {str(i) for i in range(-16, 65)}


class Op:
    __slots__ = ("text", "mn", "kind", "defs", "uses", "nbytes", "tw", "tr", "stream", "srcc", "ab", "sdwa_dst",
                 "trans", "cost", "idx", "preds", "t_issue", "note", "lat", "wide_store", "dpp", "earliest")

    def __init__(self, text, tw=(), tr=(), stream=None, kind=None, lat=None):
        self.text = text.strip()
        self.tw = set(tw)
        self.tr = set(tr)
        self.stream = stream
        self.srcc = []
        self.ab = []
        self.sdwa_dst = False
        self.trans = False
        self.wide_store = False
        self.dpp = False
        self.note = None
        self.lat = lat
        self.earliest = 0
        self.preds = []
        self.t_issue = None
        t = self.text
        if t.endswith(":"):
            self.mn = "label"; self.kind = "label"; self.defs = []; self.uses = []; self.nbytes = 0; self.cost = 0
            return
        parts = t.split(None, 1)
        mn = self.mn = parts[0]
        rest = parts[1] if len(parts) > 1 else ""
        ops = []
        depth = 0; cur = ""
        for ch in rest:
            if ch in "[(": depth += 1
            if ch in "])": depth -= 1
            if ch == "," and depth == 0:
                ops.append(cur.strip()); cur = ""
            else:
                cur += ch
        mods = ""
        cur = cur.strip()
        if cur:
            sp = cur.split(None, 1)
            ops.append(sp[0])
            mods = sp[1] if len(sp) > 1 else ""
        R = [regs_of(o) for o in ops]
        flat = lambda l: [r for x in l for r in x]
        defs, uses = [], []
        nbytes, cost = 8, 4
        if mn.startswith("v_mfma"):
            k = "m"; defs = R[0]; uses = flat(R[1:]); self.srcc = R[3]; self.ab = R[1] + R[2]; cost = 8
        elif mn.startswith("v_smfmac"):
            k = "m"; defs = R[0]; uses = flat(R); self.srcc = R[0]; self.ab = R[1] + R[2] + R[3]; cost = 12
        elif mn.startswith("v_"):
            k = "v"
            base = mn.replace("_e32", "").replace("_e64", "").replace("_sdwa", "").replace("_dpp", "")
            defs = R[0]; uses = flat(R[1:])
            if base.startswith(RMW) or "UNUSED_PRESERVE" in mods:
                uses = uses + R[0]
            if base.startswith("v_permlane"):
                defs = R[0] + R[1]; uses = R[0] + R[1]; cost = 8
            if base.startswith(("v_add_co", "v_sub_co", "v_addc_co")):
                defs = R[0] + R[1]; uses = flat(R[2:])
            if "dst_sel:WORD" in mods or "dst_sel:BYTE" in mods:
                self.sdwa_dst = True
            if base.startswith(TRANS):
                self.trans = True; cost = 8
            if base.startswith(WINDOW):
                k = "pk"
            if "_dpp" in mn or "row_" in mods or "quad_perm" in mods or "wave_" in mods:
                self.dpp = True
                if base.startswith(("v_mov",)) and "bound_ctrl" not in mods:
                    uses = uses + R[0]
            lit = any((not regs_of(o)) and o not in INLINE and not o.startswith("vcc") for o in ops[1:])
            plain = base in VOP12 and not mods and "_sdwa" not in mn and "_e64" not in mn and "_dpp" not in mn
            if plain and any(o.startswith(("-v", "|", "abs", "-abs", "-s")) for o in ops[1:]):
                plain = False
            if plain and len(ops) >= 3 and not base.startswith(("v_readfirst", "v_permlane")) and not (R[2] and R[2][0][0] == "v"):
                plain = False
            if plain and base == "v_cndmask_b32" and ops[3] != "vcc":
                plain = False
            if base.startswith("v_cmp"):
                plain = ops[0] == "vcc" and not mods and R[2] and R[2][0][0] == "v"
            nbytes = (8 if lit else 4) if plain else 8
        elif mn.startswith("ds_"):
            if mn.startswith(("ds_read", "ds_bpermute", "ds_swizzle")) or "_rtn" in mn:
                k = "dsr"; defs = R[0]; uses = flat(R[1:])
            else:
                k = "dsw"; uses = flat(R); cost = 20 if "b128" in mn else (8 if "b64" in mn else 4)
        elif mn.startswith(("buffer_load", "global_load")):
            if " lds" in (" " + mods) or "_lds_" in mn:
                k = "dma"; uses = flat(R) + [("s", "m0")]; cost = 12
            else:
                k = "vld"; defs = R[0]; uses = flat(R[1:]); cost = 12
        elif mn.startswith(("buffer_store", "global_store")):
            k = "vst"; uses = flat(R); cost = 24
            self.wide_store = "x3" in mn or "x4" in mn
            self.ab = R[0] if mn.startswith("buffer") else R[1]
        elif mn.startswith(("buffer_atomic", "global_atomic")):
            k = "vst"; uses = flat(R); cost = 12
            if "sc0" in mods:
                k = "vld"; defs = R[0]
        elif mn.startswith(("buffer_wbl2", "buffer_inv")):
            k = "vst"; cost = 12
        elif mn == "s_barrier":
            k = "bar"; nbytes = 4
        elif mn == "s_waitcnt":
            k = "wait"; nbytes = 4
        elif mn == "s_nop":
            k = "nop"; nbytes = 4; cost = 4 * (int(ops[0]) + 1)
        elif mn.startswith(("s_cbranch", "s_branch", "s_endpgm", "s_setpc")):
            k = "br"; nbytes = 4; uses = flat(R)
            if "vcc" in mn: uses = uses + [("s", "vcc")]
            if "scc" in mn: uses = uses + [("s", "scc")]
        elif mn.startswith(("s_load", "s_memtime", "s_memrealtime")):
            k = "smem"; defs = R[0]; uses = flat(R[1:])
        elif mn.startswith("s_"):
            k = "s"
            if mn.startswith(("s_cmp", "s_setprio", "s_sleep", "s_bitcmp")):
                uses = flat(R)
            else:
                defs = R[0]; uses = flat(R[1:])
                if "saveexec" in mn:
                    defs = defs + [("s", "exec")]; uses = uses + [("s", "exec")]
            if mn.startswith(("s_cselect", "s_addc", "s_subb")): uses = uses + [("s", "scc")]
            if not mn.startswith(("s_mov", "s_mul", "s_cselect", "s_setprio", "s_sleep", "s_getpc", "s_getreg")):
                defs = defs + [("s", "scc")]
            lit = any((not regs_of(o)) and o not in INLINE for o in ops[1:])
            nbytes = 8 if (lit and not mn.startswith(("s_movk", "s_setprio", "s_sleep", "s_getreg"))) else 4
        else:
            raise ValueError("unknown instruction: " + t)
        self.kind = kind or k
        self.defs = defs
        self.uses = uses
        self.nbytes = nbytes
        self.cost = cost

    def __repr__(self):
        return self.text


IS_VALU = ("v", "pk")
IS_LDS = ("dsr", "dsw", "dsg")
IS_VM = ("vld", "vst", "dma")


class Machine:
    LDS_LAT = 110
    SVC = {"dsr": 16, "dsg": 27, "dsw": 32}

    def __init__(self):
        self.t = 0
        self.last_m = -1000
        self.valu_end = -1000
        self.lds_free = 0
        self.fetch = 0

    def start_time(self, op):
        t = max(self.t, self.fetch)
        k = op.kind
        if k == "m":
            t = max(t, self.last_m + 32)
        elif k == "pk":
            t = max(t, self.last_m + 44)
        elif k in IS_LDS or k in IS_VM:
            t = max(t, self.valu_end + 8)
        return t

    def issue(self, op, t=None):
        t0 = self.start_time(op) if t is None else max(t, self.start_time(op))
        op.t_issue = t0
        self.t = t0 + op.cost
        self.fetch = max(self.fetch, t0 - 7) + (5 * op.nbytes + 7) // 8
        k = op.kind
        done = self.t
        if k == "m":
            self.last_m = t0
            done = t0 + 56
        elif k in IS_VALU:
            self.valu_end = self.t
        elif k in IS_LDS:
            s = max(self.lds_free, t0) + self.SVC[k]
            self.lds_free = s
            done = s + self.LDS_LAT
        elif k in IS_VM:
            done = t0 + (op.lat or 2500)
        return done


def build_deps(ops):
    last_w = {}
    readers = {}
    tokw = {}
    for i, op in enumerate(ops):
        op.idx = i
        p = {}
        for r in op.uses:
            if r in last_w:
                p[last_w[r]] = "raw"
        for r in op.defs:
            if r in last_w:
                p.setdefault(last_w[r], "waw")
            for j in readers.get(r, ()):
                if j != i:
                    p.setdefault(j, "war")
        for tk in op.tr:
            assert tk in tokw, ("token never written", tk, op.text)
            for j in tokw[tk]:
                p[j] = "raw"
        op.preds = [(ops[j], ty) for j, ty in p.items()]
        for r in op.uses:
            readers.setdefault(r, []).append(i)
        for r in op.defs:
            last_w[r] = i
            readers[r] = []
        for tk in op.tw:
            tokw.setdefault(tk, []).append(i)


def wait_states_between(seq, i, j):
    n = 0
    for k in range(i + 1, j):
        o = seq[k]
        if o.kind == "label":
            continue
        n += o.cost // 4 if o.kind == "nop" else 1
    return n


def required_states(p, c):
    need = 0
    pd, cu, cd = set(p.defs), set(c.uses), set(c.defs)
    pv = p.kind in IS_VALU
    cv = c.kind in IS_VALU
    if p.kind == "m":
        if c.kind == "m":
            if pd & set(c.ab): need = max(need, 12)
            if pd & set(c.srcc) and list(p.defs) != list(c.srcc): need = max(need, 10)
            if pd & cd and not (pd & set(c.srcc)) and list(p.defs) != list(c.defs): need = max(need, 10)
        elif (pd & (cu | cd)): need = max(need, 12)
        if cv and set(p.srcc) & cd: need = max(need, 7)
    if pv:
        vd = {r for r in pd if r[0] in "va"}
        sd = {r for r in pd if r[0] == "s"}
        if c.kind == "m" and vd & cu: need = max(need, 2)
        if cv:
            if p.trans and not c.trans and vd & cu: need = max(need, 1)
            if p.sdwa_dst and vd & (cu | cd): need = max(need, 1)
            if c.mn.startswith("v_permlane") and vd & cu: need = max(need, 2)
            if c.dpp and vd & cu: need = max(need, 2)
            if c.mn.startswith(("v_readfirstlane", "v_readlane")) and vd & cu: need = max(need, 1)
            if sd & cu: need = max(need, 4 if c.mn.startswith(("v_readlane", "v_writelane")) else 2)
            if p.mn.startswith("v_dot") and vd & (cu | cd):
                same = p.mn == c.mn and not (vd & (cu - cd))
                if not same: need = max(need, 3)
        if p.mn.startswith("v_dot") and not cv and vd & (cu | cd): need = max(need, 3)
        if c.kind in IS_VM and sd & cu: need = max(need, 5)
        if c.kind in ("s", "br", "smem") and sd & cu: need = max(need, 2)
        if ("s", "exec") in pd: need = max(need, 5)
    if p.wide_store and set(p.ab) & cd: need = max(need, 2)
    if p.kind == "dsw" and set(p.uses) & cd: need = max(need, 2)
    if p.kind == "s" and ("s", "m0") in pd and c.kind == "dma": need = max(need, 1)
    return need


def finalize(seq, cover=160, verbose=False):
    out = []
    mach = Machine()
    ldsq = []
    vmq = []
    smem = []
    nwait = nnop = 0

    def emit(op, t=None):
        done = mach.issue(op, t) if op.kind != "label" else 0
        out.append(op)
        return done

    seen = set()
    saved = {}
    maybe = set()
    for op in seq:
        if op.kind == "label":
            name = op.text[:-1]
            seen.add(name)
            for sl, sv, ss in saved.pop(name, []):
                def join(old, cur):
                    ids = {id(q) for q, _ in old}
                    inner = [e for e in cur if id(e[0]) not in ids]
                    for q, _ in inner: maybe.add(id(q))
                    return list(old) + inner
                ldsq = join(sl, ldsq); vmq = join(sv, vmq); smem = list(set(ss) | set(smem))
            out.append(op)
            continue
        if op.kind == "br" and op.mn.startswith(("s_cbranch", "s_branch")):
            tgt = op.text.split()[-1]
            if tgt not in seen:
                saved.setdefault(tgt, []).append((list(ldsq), list(vmq), list(smem)))
        if op.kind == "wait":
            m = re.search(r"lgkmcnt\((\d+)\)", op.text)
            tt = None
            if m:
                n = int(m.group(1))
                gone = ldsq[:len(ldsq) - n] if n else ldsq
                if gone: tt = max(d for _, d in gone)
                ldsq = ldsq[len(ldsq) - n:] if n else []
                if n == 0: smem = []
            m = re.search(r"vmcnt\((\d+)\)", op.text)
            if m:
                n = int(m.group(1))
                gone = vmq[:len(vmq) - n] if n else vmq
                if gone: tt = max(tt or 0, max(d for _, d in gone))
                vmq = vmq[len(vmq) - n:] if n else []
            emit(op)
            if tt: mach.t = max(mach.t, tt)
            continue
        touched = set(op.uses) | set(op.defs)
        need_l = -1
        for k, (q, _) in enumerate(ldsq):
            if (set(q.defs) & touched) or (q.tw & op.tr):
                need_l = k
        need_v = -1
        for k, (q, _) in enumerate(vmq):
            if (set(q.defs) & touched) or (q.tw & op.tr):
                need_v = k
        need_s = any(set(q.defs) & touched for q in smem)
        if need_l >= 0 or need_v >= 0 or need_s:
            txt = "s_waitcnt"
            tt = 0
            now = mach.t
            if need_v >= 0:
                k = need_v
                while k + 1 < len(vmq) and vmq[k + 1][1] + 1500 <= now: k += 1
                n = sum(1 for q, _ in vmq[k + 1:] if id(q) not in maybe)
                n = min(n, 63)
                txt += f" vmcnt({n})"
                tt = max(tt, vmq[need_v][1])
                vmq = vmq[k + 1:] if n < 63 else vmq[len(vmq) - 63:]
            if need_s:
                txt += " lgkmcnt(0)"
                if ldsq: tt = max(tt, ldsq[-1][1])
                ldsq = []; smem = []
            elif need_l >= 0:
                assert not smem
                k = need_l
                while k + 1 < len(ldsq) and ldsq[k + 1][1] + cover - 160 <= max(now, ldsq[need_l][1]): k += 1
                k = max(k, len(ldsq) - 16)
                n = sum(1 for q, _ in ldsq[k + 1:] if id(q) not in maybe)
                txt += f" lgkmcnt({n})"
                tt = max(tt, ldsq[need_l][1])
                ldsq = ldsq[k + 1:]
            emit(Op(txt))
            mach.t = max(mach.t, tt)
            nwait += 1
        need = 0
        dist = 0
        for k in range(len(out) - 1, max(-1, len(out) - 20), -1):
            p = out[k]
            if p.kind == "label":
                continue
            r = required_states(p, op)
            if r - dist > need: need = r - dist
            dist += p.cost // 4 if p.kind == "nop" else 1
            if dist >= 13: break
        if need > 0:
            emit(Op(f"s_nop {need - 1}"))
            nnop += need
        done = emit(op)
        if op.kind in IS_LDS: ldsq.append((op, done))
        elif op.kind in IS_VM: vmq.append((op, done))
        elif op.kind == "smem": smem.append(op)
    if verbose:
        print(f"; finalize: {len(out)} instrs, {sum(o.nbytes for o in out)} bytes, {nwait} waits, {nnop} nop states, est {mach.t} cycles")
    return out, mach.t


def schedule(ops, m_streams, v_streams, d_streams, x_streams=(), max_lds=12, trace=None, dlimit=2):
    build_deps(ops)
    S = {}
    for op in ops:
        S.setdefault(op.stream, []).append(op)
    for s in S:
        assert s in m_streams or s in v_streams or s in d_streams or s in x_streams, s
    pos = {s: 0 for s in S}
    done = {}
    order = []
    mach = Machine()
    slot = {}
    lds_done = []
    rr = 0

    def head(s):
        return S[s][pos[s]] if s in S and pos[s] < len(S[s]) else None

    def ready(op):
        t = op.earliest
        for p, ty in op.preds:
            if p.idx not in done:
                return None
            if ty == "raw" or (ty == "waw" and p.kind != "v" and p.kind != "pk"):
                if p.kind == "m" and op.kind == "m" and list(p.defs) == list(op.srcc) and not (set(p.defs) & set(op.ab)):
                    continue
                if p.kind == "m" and op.kind == "m" and ty == "waw" and list(p.defs) == list(op.defs):
                    continue
                t = max(t, done[p.idx])
        return t

    def states_ok(op):
        dist = 0
        for k in range(len(order) - 1, max(-1, len(order) - 14), -1):
            if required_states(order[k], op) > dist:
                return False
            dist += 1
        return True

    def put(op, t=None):
        d = mach.issue(op, t)
        done[op.idx] = d
        slot[op.idx] = len(order)
        order.append(op)
        pos[op.stream] += 1
        if op.kind in IS_LDS:
            lds_done.append(d)

    def lds_out(now):
        n = 0
        for d in reversed(lds_done):
            if d > now: n += 1
            else: break
        return n

    def try_d(limit):
        n = 0
        progress = True
        while n < limit and progress:
            progress = False
            for s in d_streams:
                op = head(s)
                if op is None: continue
                r = ready(op)
                if r is None or r > mach.t + 4 or not states_ok(op): continue
                if op.kind in IS_LDS and (lds_out(mach.t) >= max_lds or mach.lds_free > mach.t + 200): continue
                put(op)
                if op.kind != "s": n += 1
                progress = True
                break
        return n

    def window_soon(horizon):
        for s in v_streams:
            if s not in S: continue
            t = 0
            k = pos[s]
            while k < len(S[s]) and t < horizon:
                o = S[s][k]
                if o.kind == "pk":
                    return True
                t += o.cost
                k += 1
        return False

    total = len(ops)
    while len(order) < total:
        now = max(mach.t, mach.fetch)
        did = False
        for s in x_streams:
            op = head(s)
            if op is None: continue
            r = ready(op)
            if r is not None and r <= now and states_ok(op):
                put(op); did = True
                break
        if did: continue
        vc = []
        for s in v_streams:
            op = head(s)
            if op is None: continue
            r = ready(op)
            if r is None: continue
            vc.append((s, op, r, states_ok(op)))
        pk_ready = [c for c in vc if c[1].kind == "pk" and c[2] <= now + 4 and c[3]]
        in_window = pk_ready and mach.last_m + 44 <= now
        if mach.last_m + 32 <= now + 2 and not in_window:
            ms = list(m_streams[rr:]) + list(m_streams[:rr])
            for s in ms:
                op = head(s)
                if op is None: continue
                r = ready(op)
                if r is None or r > now + 4 or not states_ok(op): continue
                if pk_ready and op.note != "urgent": continue
                put(op)
                rr = (m_streams.index(s) + 1) % len(m_streams)
                try_d(dlimit)
                did = True
                break
        if did: continue
        best = None
        for s, op, r, ok in vc:
            if not ok or r > now + 4: continue
            if op.kind == "pk" and mach.last_m + 44 > now + 4: continue
            fetch_tight = mach.fetch > mach.t - 3
            light = op.cost == 8 or op.nbytes == 4
            score = v_streams.index(s)
            if op.kind == "pk": score -= 100
            if fetch_tight and light: score -= 10
            if not fetch_tight and op.cost == 8: score += 10
            if best is None or score < best[0]: best = (score, op)
        if best:
            put(best[1]); continue
        if try_d(1): continue
        cand = []
        for s in S:
            op = head(s)
            if op is None: continue
            r = ready(op)
            if r is None: continue
            st = max(r, mach.start_time(op))
            if op.kind in IS_LDS and lds_out(mach.t) >= 15: st = max(st, lds_done[-15])
            if not states_ok(op): st += 8
            cand.append((st, op.idx, op))
        assert cand, "deadlock in schedule: " + str({s: head(s) for s in S})
        st, _, op = min(cand)
        if trace is not None and st > now + 4:
            trace.append((now, st - now, op.stream, op.text))
        put(op, st)
        if op.kind == "m": try_d(dlimit)
    return order, mach.t
```

```python
import math, struct, sys, argparse
from asmlib import Op, finalize, schedule

NAME = "standalone__modern_conv_block_slak__vision_kernel"

K0 = -2.0 * math.sqrt(2.0 / math.pi) * math.log2(math.e)
K1 = K0 * 0.044715
CS = -(abs(K1) ** (1.0 / 3.0))
KK = K0 / CS


def f32(x): return "0x%08x" % struct.unpack("<I", struct.pack("<f", x))[0]
def f16bits(x): return struct.unpack("<H", struct.pack("<e", x))[0]


LDS_TOTAL = 163840
STG = [71680, 100096, 121856]
ROWB = 2176
CONVA = 143616
TP = 93952
TN = TP + 65536
TP_DW, TN_DW = 1536, 1088
SPARE = 93440
BVEC = 93184
SUMS = 155392
BIASV = SUMS + 1536
MEANP = BIASV + 384
assert MEANP + 16 <= 157440 and TN + TN_DW * 4 == LDS_TOTAL


def w1_addr(f): return f * 1024 if f < 70 else 157440 + (f - 70) * 1024
def w2_addr(f): return 71680 + f * 1024 if f < 21 else 100096 + (f - 21) * 1024
def raw2_addr(row): return 71680 + row * 192 if row < 112 else 100096 + (row - 112) * 192


S_X, S_OUT, S_WS, S_W1, S_W2, S_DW, S_G, S_B, S_DBG, S_CODE = 4, 8, 12, 16, 20, 24, 28, 32, 36, 40
S_KA = 44
S_WAVE, S_Y0, S_X0, S_T0, S_T1, S_T2, S_T3 = 62, 63, 64, 65, 66, 67, 68
S_M0 = 70
S_ROW = 76
S_K16, S_TBASE, S_SCALE, S_UNSC, S_DELTA, S_64, S_128, S_SHARD = 84, 85, 86, 87, 88, 89, 90, 91
S_SAVE = 92
S_ST = 94
S_MUL4 = 96
S_CNT = 97
S_W2M = 69


def srd(b): return f"s[{b}:{b+3}]"
def v(n, k=1): return f"v{n}" if k == 1 else f"v[{n}:{n+k-1}]"
def a(n, k=1): return f"a{n}" if k == 1 else f"a[{n}:{n+k-1}]"


V_TID = 0
V_LANE16 = 1
V_FB1 = 2
V_FB2 = 3
V_IDX = 4
V_CA = 5
V_CB = 6
V_DMA = 12
V_G = 18
V_BB = 20
V_FLAG = 21
V_SQ = 22
V_LN = 46
V_E = 62
V_B = 70
V_A = 86
V_POOL = 102
V_Y = 160

A_LN = 0
A_CVA = 144
A_CVB = 156
A_W = 192
A_ZERO = 240
A_TAB = 244
A_BIAS = 240
A_ONES = 248
A_ID = 252


class Gen:
    def __init__(self, cfg):
        self.cfg = cfg
        self.out = []
        self.lut1 = cfg.lut1
        self.nstamp = 0

    def seq(self, lines):
        for l in lines.strip().split("\n"):
            l = l.split(";")[0].strip()
            if l:
                self.out.append(Op(l))

    def stamp(self):
        if not self.cfg.stamps: return
        i = self.nstamp; self.nstamp += 1
        self.seq(f"""
            s_memtime s[{S_ST}:{S_ST+1}]
            s_waitcnt lgkmcnt(0)
            v_writelane_b32 v{self.cfg.stamp_reg}, s{S_ST}, {i}
        """)

    def frag_base(self, addr):
        b = addr >> 16
        return (V_LANE16, V_FB1, V_FB2)[b], addr & 0xffff

    def prologue(self):
        c = self.cfg
        s = self.seq
        s(f"""
            s_cmp_ge_u32 s2, 0x100
            s_cbranch_scc0 L_go
            s_endpgm
            L_go:
            s_load_dwordx16 s[{S_KA}:{S_KA+15}], s[0:1], 0
            s_load_dwordx2 s[{S_KA+16}:{S_KA+17}], s[0:1], 64
            v_lshrrev_b32 v46, 6, v0
            v_and_b32 v47, 63, v0
            v_readfirstlane_b32 s{S_WAVE}, v46
            v_lshlrev_b32 v{V_LANE16}, 4, v47
            v_add_u32 v{V_FB1}, 0x10000, v{V_LANE16}
            v_add_u32 v{V_FB2}, 0x20000, v{V_LANE16}
            s_and_b32 s{S_SHARD}, s2, 7
            s_lshr_b32 s{S_T0}, s2, 3
            s_lshr_b32 s{S_T1}, s{S_T0}, 4
            s_lshl_b32 s{S_Y0}, s{S_SHARD}, 1
            s_add_u32 s{S_Y0}, s{S_Y0}, s{S_T1}
            s_lshl_b32 s{S_Y0}, s{S_Y0}, 5
            s_and_b32 s{S_X0}, s{S_T0}, 15
            s_lshl_b32 s{S_X0}, s{S_X0}, 5
            s_mov_b32 s{S_64}, 64
            s_movk_i32 s{S_128}, 0x80
            s_mov_b32 s{S_K16}, 0x{f16bits(KK):04x}{f16bits(KK):04x}
            s_mov_b32 s{S_TBASE}, {TP}
            s_mov_b32 s{S_DELTA}, 0
        """)
        if c.stamps:
            s(f"v_mov_b32 v{c.stamp_reg}, 0")
        self.stamp()
        s(f"""
            v_and_b32 v48, 31, v47
            v_lshrrev_b32 v49, 5, v47
        """)
        for k in range(6):
            s(f"""
                s_lshl_b32 s{S_T0}, s{S_WAVE}, 6
                s_add_u32 s{S_T0}, s{S_T0}, {256 * k}
                s_min_u32 s{S_T0}, s{S_T0}, 1296
                s_lshl_b32 s{S_M0+k}, s{S_T0}, 4
                v_add_u32 v50, s{S_T0}, v47
                v_mul_u32_u24 v51, 482, v50
                v_lshrrev_b32 v51, 16, v51
                v_mul_u32_u24 v52, 136, v51
                v_sub_u32 v52, v50, v52
                v_lshrrev_b32 v53, 2, v52
                v_and_b32 v52, 3, v52
                v_bfe_u32 v54, v53, 2, 2
                v_xor_b32 v52, v52, v54
                s_sub_u32 s{S_T1}, s{S_X0}, 1
                v_add_u32 v53, s{S_T1}, v53
                s_sub_u32 s{S_T2}, s{S_Y0}, 1
                v_add_u32 v51, s{S_T2}, v51
                v_lshl_add_u32 v51, v51, 9, v53
                s_movk_i32 s{S_T3}, 0xc0
                v_mul_lo_u32 v51, v51, s{S_T3}
                v_lshl_add_u32 v51, v52, 4, v51
                v_cmp_gt_u32 vcc, 0x200, v53
                v_mov_b32 v52, 0x80000000
                v_cndmask_b32 v{V_DMA+k}, v52, v51, vcc
            """)
        s("s_waitcnt lgkmcnt(0)")
        for base, ka, size in ((S_X, 0, 50331648), (S_DW, 1, 1728), (S_W1, 2, 73728), (S_W2, 3, 73728), (S_G, 4, 768),
                               (S_B, 5, 768), (S_OUT, 6, 50331648), (S_DBG, 7, 256), (S_WS, 8, c.ws_bytes)):
            s(f"""
                s_mov_b32 s{base}, s{S_KA+2*ka}
                s_and_b32 s{base+1}, s{S_KA+2*ka+1}, 0xffff
                s_mov_b32 s{base+2}, {size}
                s_mov_b32 s{base+3}, 0x20000
            """)
        for q in range(3):
            for op in self.dma_ops(q, None): self.out.append(op)
        s(f"""
            v_mul_u32_u24 v50, 12, v48
            v_mul_u32_u24 v51, 3072, v49
            v_add_u32 v50, v50, v51
        """)
        for i in range(3):
            s(f"""
                s_mul_i32 s{S_T0}, s{S_WAVE}, 3
                s_add_u32 s{S_T0}, s{S_T0}, {i}
                s_lshr_b32 s{S_T1}, s{S_T0}, 1
                s_and_b32 s{S_T0}, s{S_T0}, 1
                s_mul_i32 s{S_T1}, s{S_T1}, {16 * 768}
                s_mul_i32 s{S_T0}, s{S_T0}, 384
                s_add_u32 s{S_T0}, s{S_T0}, s{S_T1}
                s_add_u32 s{S_T1}, s{S_T0}, {8 * 768}
            """)
            for j in range(8):
                s(f"buffer_load_dwordx3 {v(160 + 32 * i + 4 * j, 3)}, v50, {srd(S_W1)}, s{S_T0 if j < 4 else S_T1} offen offset:{(j & 3) * 768}")
        for k in range(4):
            s(f"""
                v_add_u32 v50, {256 * k}, v0
                v_lshrrev_b32 v51, 5, v50
                v_mul_u32_u24 v52, 57, v51
                v_lshrrev_b32 v52, 9, v52
                v_mul_u32_u24 v53, 9, v52
                v_sub_u32 v53, v51, v53
                v_mul_u32_u24 v53, 96, v53
                v_lshl_add_u32 v53, v52, 5, v53
                v_add_u32 v53, v53, v48
                v_lshlrev_b32 v53, 1, v53
                buffer_load_ushort v{102 + k}, v53, {srd(S_DW)}, 0 offen
            """)
        s(f"""
            v_min_u32 v50, 47, v47
            s_mul_i32 s{S_T0}, s{S_WAVE}, 96
            v_lshl_add_u32 v50, v50, 1, s{S_T0}
            v_lshrrev_b32 v51, 5, v50
            v_and_b32 v52, 31, v50
            v_mul_u32_u24 v52, 6, v52
            v_add_u32 v52, v52, v51
            v_cmp_lt_u32 vcc, 5, v51
            v_mov_b32 v53, 0
            v_mov_b32 v54, 186
            v_cndmask_b32 v53, v53, v54, vcc
            v_add_u32 v52, v52, v53
            v_lshlrev_b32 v52, 1, v52
            buffer_load_ushort v{V_G}, v52, {srd(S_G)}, 0 offen
            buffer_load_ushort v{V_G+1}, v52, {srd(S_G)}, 0 offen offset:12
            buffer_load_ushort v{V_BB}, v52, {srd(S_B)}, 0 offen
            buffer_load_ushort v{V_FLAG}, v52, {srd(S_B)}, 0 offen offset:12
        """)
        s(f"""
            s_cmp_ge_u32 s2, 8
            s_cbranch_scc1 L_noinit
            s_cmp_lg_u32 s{S_WAVE}, 0
            s_cbranch_scc1 L_noinit
            v_mov_b32 v52, 0
            v_mov_b32 v53, 0
            v_mov_b32 v54, 0
            v_mov_b32 v55, 0
            s_lshl_b32 s{S_T0}, s2, 11
            s_lshl_b32 s{S_T1}, s2, 8
            s_add_u32 s{S_T1}, s{S_T1}, 0x10000
            v_and_b32 v50, 7, v47
            v_lshlrev_b32 v50, 11, v50
            buffer_store_dwordx4 v[52:55], v{V_LANE16}, {srd(S_WS)}, s{S_T0} offen sc1
            buffer_store_dwordx4 v[52:55], v{V_LANE16}, {srd(S_WS)}, s{S_T0} offen offset:1024 sc1
            buffer_store_dword v52, v50, {srd(S_WS)}, s{S_T1} offen sc1
            s_waitcnt vmcnt(0)
            v_mov_b32 v52, 1
            v_mov_b32 v53, 0
            s_mov_b64 exec, 1
            buffer_atomic_add v52, v53, {srd(S_DBG)}, 0 offen
            s_mov_b64 exec, -1
            L_noinit:
        """)
        if c.prefetch:
            s(f"""
                s_getpc_b64 s[{S_CODE}:{S_CODE+1}]
                L_pc:
                s_and_b32 s{S_CODE+1}, s{S_CODE+1}, 0xffff
                s_mov_b32 s{S_CODE+2}, L_last-L_pc
                s_mov_b32 s{S_CODE+3}, 0x20000
                s_lshr_b32 s{S_T0}, s2, 3
                s_and_b32 s{S_T0}, s{S_T0}, 7
                s_lshl_b32 s{S_T0}, s{S_T0}, 2
                s_add_u32 s{S_T0}, s{S_T0}, s{S_WAVE}
                s_lshl_b32 s{S_T0}, s{S_T0}, 13
                v_lshlrev_b32 v50, 7, v47
                buffer_load_dword v106, v50, {srd(S_CODE)}, s{S_T0} offen
            """)
        s(f"""
            v_and_b32 v50, 3, v48
            v_xor_b32 v51, 1, v50
            v_lshl_or_b32 v50, v51, 2, v50
            v_mul_u32_u24 v{V_IDX}, 0x1111, v50
            v_bfe_u32 v50, v48, 3, 1
            v_lshlrev_b32 v51, 4, v48
            v_add_u32 v51, {CONVA}, v51
            v_cmp_eq_u32 vcc, v50, v49
            v_mov_b32 v52, 0x40000000
            v_cndmask_b32 v{V_CA}, v52, v51, vcc
            s_mul_i32 s{S_T0}, s{S_WAVE}, {2 * ROWB}
            s_add_u32 s{S_T0}, s{S_T0}, {STG[0]}
        """)
        for dx in range(3):
            for q in range(2):
                s(f"""
                    v_add_u32 v50, {dx}, v48
                    v_bfe_u32 v51, v50, 2, 2
                    v_lshl_or_b32 v52, v49, 1, {q}
                    v_xor_b32 v51, v51, v52
                    v_lshl_add_u32 v51, v50, 2, v51
                    v_lshl_add_u32 v{V_CB + 2 * dx + q}, v51, 4, s{S_T0}
                """)
        for p in range(4):
            for t in range(2):
                s(f"""
                    s_lshl_b32 s{S_T0}, s{S_WAVE}, 1
                    s_add_u32 s{S_T0}, s{S_T0}, s{S_Y0}
                    s_add_u32 s{S_T0}, s{S_T0}, {8 * p + t}
                    s_lshl_b32 s{S_T0}, s{S_T0}, 9
                    s_add_u32 s{S_T0}, s{S_T0}, s{S_X0}
                    s_mul_i32 s{S_ROW + 2 * p + t}, s{S_T0}, 0xc0
                """)
        s(f"""
            s_cmp_ge_u32 s{S_WAVE}, 1
            s_cselect_b32 s{S_W2M}, {100096 - 21 * 1024 - 71680}, 0
            s_lshl_b32 s{S_T0}, s{S_WAVE}, 10
            s_add_u32 s{S_T0}, s{S_T0}, {71680 + 5 * 4096}
            s_add_u32 s{S_W2M}, s{S_W2M}, s{S_T0}
        """)
        for r in range(4): s(f"v_accvgpr_write_b32 a{A_ZERO + r}, 0")
        for r in range(24): s(f"v_mov_b32 v{V_SQ + r}, 0")
        s(f"""
            v_lshrrev_b32 v50, 4, v48
            v_bfe_u32 v51, v48, 2, 1
            v_lshl_or_b32 v50, v50, 1, v51
            v_lshlrev_b32 v56, 4, v0
        """)
        for k in range(4):
            for g in range(4):
                s(f"""
                    v_cmp_eq_u32 vcc, {g}, v50
                    v_cndmask_b32 v{52 + g}, 0, v{102 + k}, vcc
                """)
            if k == 3:
                s(f"""
                    v_cmp_gt_u32 vcc, 96, v0
                    s_and_saveexec_b64 s[{S_SAVE}:{S_SAVE+1}], vcc
                    s_cbranch_execz L_ca_skip
                """)
            s(f"v_add_u32 v57, {CONVA + 4096 * k}, v56")
            s(f"ds_write_b128 v57, v[52:55]")
            if k == 3:
                s(f"""
                    s_waitcnt lgkmcnt(0)
                    L_ca_skip:
                    s_mov_b64 exec, s[{S_SAVE}:{S_SAVE+1}]
                """)
        s(f"v_lshl_or_b32 v{V_BB}, v{V_FLAG}, 16, v{V_BB}")
        s(f"v_lshlrev_b32 v{V_G}, 16, v{V_G}")
        s(f"v_lshlrev_b32 v{V_G+1}, 16, v{V_G+1}")
        raw = [160 + 4 * j + d for j in range(24) for d in range(3)]
        s("v_pk_maximum3_f16 v58, v160, v161, v161\nv_pk_minimum3_f16 v59, v160, v161, v161")
        for r in range(2, 72, 2):
            s(f"v_pk_maximum3_f16 v58, v58, v{raw[r]}, v{raw[r+1]}\nv_pk_minimum3_f16 v59, v59, v{raw[r]}, v{raw[r+1]}")
        s(f"""
            v_and_b32 v58, 0x7fff7fff, v58
            v_and_b32 v59, 0x7fff7fff, v59
            v_pk_max_u16 v58, v58, v59
            v_lshrrev_b32 v59, 16, v58
            v_and_b32 v58, 0xffff, v58
            v_max_u32 v58, v58, v59
            v_mov_b32 v59, {SPARE}
            v_mov_b32 v57, 0
            ds_write_b32 v59, v57
            s_waitcnt lgkmcnt(0)
            s_barrier
            ds_max_u32 v59, v58
            L_prep:
            s_add_u32 s{S_T0}, s{S_DELTA}, 112
            s_lshl_b32 s{S_T0}, s{S_T0}, 23
            s_sub_u32 s{S_SCALE}, 0xbf800000, s{S_T0}
            s_add_u32 s{S_UNSC}, 0x3f800000, s{S_T0}
        """)
        for k in range(11):
            neg = k >= 6
            i0 = 256 * k - (TP_DW if neg else 0)
            sg = "" if neg else "-"
            s(f"""
                v_add_u32 v50, {i0}, v0
                v_min_u32 v50, {(TN_DW if neg else TP_DW) - 1}, v50
                v_lshlrev_b32 v52, 17, v50
                v_or_b32 v52, 0x8000, v52
                v_add_u32 v53, 0x10000, v52
                v_mul_f32_e64 v52, {sg}v52, s{S_UNSC}
                v_mul_f32_e64 v53, {sg}v53, s{S_UNSC}
                v_fmaak_f32 v54, v52, v52, {f32(KK)}
                v_fmaak_f32 v55, v53, v53, {f32(KK)}
                v_mul_f32 v54, v52, v54
                v_mul_f32 v55, v53, v55
                v_exp_f32 v54, v54
                v_exp_f32 v55, v55
                v_lshlrev_b32 v50, 2, v50
                v_add_f32 v54, 1.0, v54
                v_add_f32 v55, 1.0, v55
                v_rcp_f32 v54, v54
                v_rcp_f32 v55, v55
                v_add_u32 v50, {TN if neg else TP}, v50
                v_mul_f32 v52, v52, v54
                v_mul_f32 v53, v53, v55
                v_cvt_pk_f16_f32 v54, v52, v53
                v_mul_f32 v52, v52, v52
                v_mul_f32 v53, v53, v53
                v_accvgpr_write_b32 a{A_TAB + k}, v54
                v_cvt_pk_bf16_f32 v52, v52, v53
                ds_write_b32 v50, v52
            """)
        l0 = [self.lut1[i] == "L" for i in range(6)]
        l1 = [self.lut1[6 + i] == "L" for i in range(6)]
        s("s_mov_b32 s98, 0x05040100\ns_mov_b32 s99, 0x07060302")
        for i in range(3):
            s(f"""
                s_mul_i32 s{S_T0}, s{S_WAVE}, 3
                s_add_u32 s{S_T0}, s{S_T0}, {i}
                s_lshr_b32 s{S_T1}, s{S_T0}, 1
                s_and_b32 s{S_T0}, s{S_T0}, 1
                s_mul_i32 s{S_T2}, s{S_T0}, 36
                s_add_u32 s{S_T2}, s{S_T2}, s{S_T1}
            """)
            for c6 in range(6):
                d, e = c6 >> 1, c6 & 1
                R = lambda j: 160 + 32 * i + 4 * j + d
                if not l0[c6] and not l1[c6]:
                    for t in range(4):
                        s(f"v_perm_b32 v{52 + t}, v{R(2*t+1)}, v{R(2*t)}, s{98 + e}")
                else:
                    if l0[c6] and l1[c6]:
                        s(f"s_mov_b32 s{S_MUL4}, s{S_SCALE}")
                    else:
                        s(f"s_cmp_eq_u32 s{S_T0}, {0 if l0[c6] else 1}\ns_cselect_b32 s{S_MUL4}, s{S_SCALE}, 1.0")
                    for t in range(4):
                        for u in range(2):
                            if e: s(f"v_and_b32 v{60 + u}, 0xffff0000, v{R(2*t+u)}")
                            else: s(f"v_lshlrev_b32 v{60 + u}, 16, v{R(2*t+u)}")
                        s(f"v_mul_f32 v60, s{S_MUL4}, v60\nv_mul_f32 v61, s{S_MUL4}, v61\nv_cvt_pk_bf16_f32 v{52 + t}, v60, v61")
                s(f"""
                    s_add_u32 s{S_T3}, s{S_T2}, {6 * c6}
                    s_cmp_ge_u32 s{S_T3}, 70
                    s_cselect_b32 s{S_CNT}, {157440 - 70 * 1024}, 0
                    s_lshl_b32 s{S_T3}, s{S_T3}, 10
                    s_add_u32 s{S_T3}, s{S_T3}, s{S_CNT}
                    v_add_u32 v57, s{S_T3}, v{V_LANE16}
                    ds_write_b128 v57, v[52:55]
                """)
        s(f"""
            s_waitcnt vmcnt(0) lgkmcnt(0)
            s_barrier
            ds_read_b32 v58, v59
            s_waitcnt lgkmcnt(0)
            v_readfirstlane_b32 s{S_T0}, v58
            s_lshr_b32 s{S_T0}, s{S_T0}, 7
            s_sub_i32 s{S_T0}, s{S_T0}, {127 + 2}
            s_max_i32 s{S_T0}, s{S_T0}, 0
            s_min_i32 s{S_T0}, s{S_T0}, 14
            s_cmp_eq_u32 s{S_T0}, s{S_DELTA}
            s_mov_b32 s{S_DELTA}, s{S_T0}
            s_cbranch_scc0 L_prep
        """)
        self.stamp()

    def dma_ops(self, q, tr, stream="DX"):
        p, cb = divmod(q, 3)
        ops = []
        so = ("0", f"s{S_64}", f"s{S_128}")[cb]
        for k in range(6):
            ops.append(Op(f"s_add_u32 m0, s{S_M0+k}, {STG[cb]}", stream=stream, tr=tr or ()))
            ops.append(Op(f"buffer_load_dwordx4 v{V_DMA+k}, {srd(S_X)}, {so} offen {self.cfg.xpol} lds", stream=stream,
                          tw=[("dma", q)], lat=self.cfg.dma_lat))
        return ops

    def conv_unit(self, q, bar_tok):
        p, cb = divmod(q, 3)
        ops = []
        Y = [V_Y + 48 * t + 16 * cb for t in range(2)]
        for t in range(2):
            ops.append(Op(f"v_mfma_f32_32x32x16_bf16 {v(Y[t],16)}, {a(A_ZERO,4)}, {a(A_ZERO,4)}, 0", stream="MC"))
        for dx in range(3):
            for ir in range(4):
                bb = A_CVB + 8 * (self.cvb % 3); self.cvb += 1
                for h in range(2):
                    ops.append(Op(f"ds_read_b128 {a(bb + 4*h,4)}, v{V_CB + 2*dx + h} offset:{STG[cb] - STG[0] + ir * ROWB}",
                                  stream="DC", tr=[bar_tok], tw=[("rd", q)]))
                if ir < 3:
                    ab = A_CVA + 4 * (self.cva % 3); self.cva += 1
                    ops.append(Op(f"ds_read_b128 {a(ab,4)}, v{V_CA} offset:{(cb * 9 + ir * 3 + dx) * 512}", stream="DC",
                                  tw=[("rd", q)]))
                    cur = ab
                    ops.append(Op(f"v_smfmac_f32_32x32x32_bf16 {v(Y[0],16)}, {a(cur,4)}, {a(bb,8)}, v{V_IDX}", stream="MC"))
                if ir > 0:
                    ops.append(Op(f"v_smfmac_f32_32x32x32_bf16 {v(Y[1],16)}, {a(prev,4)}, {a(bb,8)}, v{V_IDX}", stream="MC"))
                prev = cur
        return ops

    def ln_stats(self, p, cb):
        ops = []
        for t in range(2):
            Y = V_Y + 48 * t + 16 * cb
            S, Q = V_LN + 4 * t, V_LN + 4 * t + 2
            g = []
            for k in range(8):
                y = v(Y + 2 * k, 2)
                if cb == 0 and k == 0:
                    g.append(f"v_pk_mul_f32 {v(Q,2)}, {y}, {y}")
                else:
                    g.append(f"v_pk_fma_f32 {v(Q,2)}, {y}, {y}, {v(Q,2)}")
                if cb == 0 and k == 0: continue
                if cb == 0 and k == 1:
                    g.append(f"v_pk_add_f32 {v(S,2)}, {v(Y,2)}, {y}")
                else:
                    g.append(f"v_pk_add_f32 {v(S,2)}, {v(S,2)}, {y}")
            ops += [Op(x, stream="VL") for x in g]
        return ops

    def ln_finish(self, p):
        L = []
        for t in range(2):
            S, Q = V_LN + 4 * t, V_LN + 4 * t + 2
            L += [f"v_add_f32 v{S}, v{S}, v{S+1}", f"v_add_f32 v{Q}, v{Q}, v{Q+1}"]
        for t in range(2):
            S, Q = V_LN + 4 * t, V_LN + 4 * t + 2
            L += [f"v_permlane32_swap_b32 v{S}, v{Q}"]
        for t in range(2):
            S, Q = V_LN + 4 * t, V_LN + 4 * t + 2
            L += [f"v_add_f32 v{S}, v{S}, v{Q}"]
        for t in range(2):
            S, Q = V_LN + 4 * t, V_LN + 4 * t + 2
            L += [f"v_mov_b32 v{Q}, v{S}"]
        for t in range(2):
            S, Q = V_LN + 4 * t, V_LN + 4 * t + 2
            L += [f"v_permlane32_swap_b32 v{S}, v{Q}"]
        stages = [
            lambda S, Q: f"v_mul_f32 v{S}, {f32(1/96)}, v{S}",
            lambda S, Q: f"v_mul_f32 v{Q}, {f32(1/96)}, v{Q}",
            lambda S, Q: f"v_fma_f32 v{Q}, -v{S}, v{S}, v{Q}",
            lambda S, Q: f"v_max_f32 v{Q}, 0, v{Q}",
            lambda S, Q: f"v_add_f32 v{Q}, {f32(1e-5)}, v{Q}",
            lambda S, Q: f"v_rsq_f32 v{Q}, v{Q}",
            lambda S, Q: f"v_mul_f32 v{Q}, {f32(CS)}, v{Q}",
            lambda S, Q: f"v_mul_f32_e64 v{S}, -v{S}, v{Q}",
        ]
        for st in stages:
            for t in range(2):
                L.append(st(V_LN + 4 * t, V_LN + 4 * t + 2))
        ops = [Op(x, stream="VL") for x in L]
        for t in range(2):
            S, Q = V_LN + 4 * t, V_LN + 4 * t + 2
            for k in range(24):
                y = v(V_Y + 48 * t + 2 * k, 2)
                ops.append(Op(f"v_pk_fma_f32 {y}, {y}, {v(Q,2)}, {v(S,2)} op_sel_hi:[1,0,0]", stream="VL"))
        n = 0
        pend = []
        for t in range(2):
            for k in range(24):
                tmp = V_LN + 8 + (n % 8); n += 1
                ops.append(Op(f"v_cvt_pk_bf16_f32 v{tmp}, v{V_Y + 48*t + 2*k}, v{V_Y + 48*t + 2*k + 1}", stream="VL"))
                pend.append(Op(f"v_accvgpr_write_b32 a{A_LN + 48*p + 24*t + k}, v{tmp}", stream="VL"))
                if len(pend) > 2: ops.append(pend.pop(0))
        return ops + pend

    def w_read(self, addr, pool, stream, tr=()):
        buf = A_W + 4 * pool
        b, off = self.frag_base(addr)
        return Op(f"ds_read_b128 {a(buf,4)}, v{b} offset:{off}", stream=stream, tr=tr), buf

    def chain(self, acc, A, B):
        E = V_E
        CV = [f"v_cvt_pk_f16_f32 v{A+i}, v{acc+2*i}, v{acc+2*i+1}" for i in range(8)]
        T = [f"v_pk_fma_f16 v{B+i}, v{A+i}, v{A+i}, s{S_K16}" for i in range(8)]
        Z = [f"v_pk_mul_f16 v{B+i}, v{A+i}, v{B+i}" for i in range(8)]
        hi = "dst_sel:WORD_1 dst_unused:UNUSED_PRESERVE src0_sel:WORD_1"
        def tr(op):
            l = []
            for i in range(10):
                if i < 8: l.append(f"{op} v{E+i}, v{B+i}")
                if i >= 2: l.append(f"{op}_sdwa v{E+i-2}, v{B+i-2} {hi}")
            return l
        D = [f"v_pk_add_f16 v{B+i}, v{E+i}, 1.0 op_sel_hi:[1,0]" for i in range(8)]
        Y = [f"v_pk_mul_f16 v{A+i}, v{A+i}, v{E+i}" for i in range(8)]
        head = []
        for i in range(10):
            if i < 8: head.append(CV[i])
            if 1 <= i < 9: head.append(T[i-1])
            if i >= 2: head.append(Z[i-2])
        return head, tr("v_exp_f16"), D, tr("v_rcp_f16"), Y

    def act_stream(self, slots, phase, g1, g2):
        ops = []
        O = lambda l, st: [Op(x, stream=st) for x in l]
        pendY = None
        pendL = []
        busy = {}
        rdy = set()
        nxt2 = [0]
        def take(key, u):
            assert key not in busy, ("buffer still in use", key, busy[key], u)
            busy[key] = u
        def consume(u):
            if phase == 1:
                ops.extend(g2(u)); busy.pop(("A", slots[u].get("A")), None)
                return
            rdy.add(u)
            while nxt2[0] in rdy:
                ops.extend(g2(nxt2[0])); del busy[("A", slots[nxt2[0]]["A"])]; nxt2[0] += 1
        def finish_c(u):
            ops.extend(O(slots[u]["Y"], "VN")); consume(u)
        def finish_l(u):
            sl = slots[u]
            if phase == 2:
                take(("A", sl["A"]), u)
                ops.extend(O([f"v_or_b32 v{sl['A']+i}, v{sl['acc']+2*i}, v{sl['acc']+2*i+1}" for i in range(8)], "VN"))
            del busy[("acc", sl["acc"])]
            consume(u)
        for u, sl in enumerate(slots):
            take(("acc", sl["acc"]), u)
            ops.extend(g1(u))
            if sl["kind"] == "L":
                acc = sl["acc"]
                for i in range(16):
                    ops.append(Op(f"v_mad_u32_u16 v{acc+i}, v{acc+i}, 2, s{S_TBASE} op_sel:[1,0,0,0]", stream="VN"))
                for i in range(16):
                    mn = "ds_read_u16_d16_hi" if (phase == 1 or i & 1) else "ds_read_u16"
                    ops.append(Op(f"{mn} v{acc+i}, v{acc+i}", stream="DG", kind="dsg"))
                pendL.append(u)
                if len(pendL) > self.cfg.l_lag:
                    finish_l(pendL.pop(0))
            else:
                head, E, D, R, Y = self.chain(sl["acc"], sl["A"], sl["B"])
                sl["Y"] = Y
                take(("A", sl["A"]), u)
                del busy[("acc", sl["acc"])]
                ops.extend(O(head, "VN"))
                if pendY is not None: finish_c(pendY)
                ops.extend(O(E, "VT"))
                ops.extend(O(D, "VN"))
                ops.extend(O(R, "VT"))
                pendY = u
                nxt = slots[u + 1]["kind"] if u + 1 < len(slots) else None
                if pendL: finish_l(pendL.pop(0))
                if nxt != "C":
                    self._late = True
            if sl["kind"] == "L" and pendY is not None:
                finish_c(pendY); pendY = None
        if pendY is not None: finish_c(pendY)
        for u in pendL: finish_l(u)
        return ops

    def phase1(self):
        c = self.cfg
        self.cvb = self.cva = 0
        ops = []
        bar = lambda name, tr: Op("s_barrier", stream="X", tr=tr, tw=[name])
        adv = lambda: [Op(f"v_add_u32 v{V_DMA+k}, {8 * 98304}, v{V_DMA+k}", stream="VL") for k in range(6)]
        ops.append(Op("s_nop 0", stream="X", tw=[("bar", 0), ("dma", 0), ("dma", 1), ("dma", 2)]))
        def unit(q):
            r = []
            if q > 0:
                r.append(bar(("bar", q), [("rd", q - 1), ("dma", q)]))
                if q + 2 < 12 and q != 3:
                    if (q + 2) % 3 == 0: r += adv()
                    r += self.dma_ops(q + 2, [("bar", q)])
            r += self.conv_unit(q, ("bar", q))
            r += self.ln_stats(q // 3, q % 3)
            if q == 2:
                r.append(bar(("bar", "2b"), [("rd", 2)]))
                r += self.dma_ops(5, [("bar", "2b")])
            if q % 3 == 2: r += self.ln_finish(q // 3)
            return r
        for q in range(3): ops += unit(q)
        slots = []
        npool, nA = c.pool1, 2
        na = nb = 0
        for p in range(4):
            for ch in range(12):
                for t in range(2):
                    u = len(slots)
                    k = self.lut1[ch]
                    d = dict(kind=k, acc=V_POOL + 16 * (u % npool), p=p, c=ch, t=t)
                    if k == "C":
                        d["A"] = V_A + 8 * (na % nA); na += 1
                        d["B"] = V_B + 8 * (nb % 2); nb += 1
                    slots.append(d)
        self.wn = 0
        frag = {}
        extra = {}
        def g1(u):
            sl = slots[u]; r = []
            if u in extra: r += extra[u]()
            for ks in range(6):
                if sl["t"] == 0:
                    op, frag[ks] = self.w_read(w1_addr(6 * sl["c"] + ks), self.wn % 12, "D1"); self.wn += 1
                    r.append(op)
                cc = "0" if ks == 0 else v(sl["acc"], 16)
                r.append(Op(f"v_mfma_f32_32x32x16_bf16 {v(sl['acc'],16)}, {a(A_LN + 48*sl['p'] + 24*sl['t'] + 4*ks,4)}, {a(frag[ks],4)}, {cc}", stream="M1"))
            return r
        def g2(u):
            sl = slots[u]; sq = V_SQ + 2 * sl["c"]
            if sl["kind"] == "C":
                return [Op(f"v_dot2c_f32_f16 v{sq + (i & 1)}, v{sl['A']+i}, v{sl['A']+i}", stream="VW") for i in reversed(range(8))]
            return [Op(f"v_pk_add_f32 {v(sq,2)}, {v(sq,2)}, {v(sl['acc']+2*i,2)}", stream="VW") for i in reversed(range(8))]
        for p in range(3):
            extra[24 * p + 23] = (lambda p=p: unit(3 * p + 3) + unit(3 * p + 4) + unit(3 * p + 5))
        def tail():
            r = [bar(("bar", 12), [("rd", 11)])]
            for k in range(18):
                r.append(Op(f"s_add_u32 s{S_T0}, s{S_T1}, {4096 * k}", stream="DX", tr=[("bar", 12)]))
                if k == 5: r.append(Op(f"s_mov_b32 m0, s{S_W2M}", stream="DX"))
                else: r.append(Op(f"s_add_u32 m0, s{S_T0}, {71680 if k < 5 else 100096 - 21 * 1024}", stream="DX"))
                r.append(Op(f"buffer_load_dwordx4 v{V_LANE16}, {srd(S_W2)}, s{S_T0} offen lds", stream="DX", tw=[("w2raw",)], lat=c.dma_lat))
            r.append(Op(f"buffer_load_dword v{V_FLAG}, v{V_CB}, {srd(S_DBG)}, 0 offen sc1", stream="DX", lat=c.dma_lat))
            r.append(Op(f"ds_write_b64 v{V_CB+1}, {a(A_ZERO,2)}", stream="DX", tr=[("bar", 12)], tw=[("w2raw",)]))
            r.append(Op(f"ds_write_b32 v{V_CB+2}, v{V_BB}", stream="DX", tr=[("bar", 12)], tw=[("w2raw",)]))
            r.append(bar(("bar", 13), [("w2raw",)]))
            return r
        def tail_pre():
            L = [f"s_lshl_b32 s{S_T1}, s{S_WAVE}, 10",
                 f"v_mov_b32 v{V_CB}, 0",
                 f"v_min_u32 v{V_CB+1}, 239, v0",
                 f"v_lshlrev_b32 v{V_CB+1}, 3, v{V_CB+1}",
                 f"v_add_u32 v{V_CB+1}, {SUMS}, v{V_CB+1}",
                 f"v_lshrrev_b32 v{V_CB+2}, 2, v{V_LANE16}",
                 f"v_min_u32 v{V_CB+2}, 188, v{V_CB+2}",
                 f"s_mul_i32 s{S_T3}, s{S_WAVE}, 192",
                 f"s_add_u32 s{S_T3}, s{S_T3}, {BVEC}",
                 f"v_add_u32 v{V_CB+2}, s{S_T3}, v{V_CB+2}"]
            return [Op(x, stream="VL") for x in L]
        extra[72] = lambda: tail_pre() + tail()
        ops += self.act_stream(slots, 1, g1, g2)
        return self.run(ops, ["M1", "MC"], ["VW", "VL", "VN", "VT"], ["DG", "D1", "DC", "DX"], ["X"], "phase1")

    def run(self, ops, ms, vs, ds, xs, name):
        if self.cfg.nosched:
            self.out += ops
            return
        tr = []
        order, t = schedule(ops, ms, vs, ds, xs, trace=tr, dlimit=self.cfg.dlimit)
        st = {}
        for now, d, s, txt in tr: st[s] = st.get(s, 0) + d
        print(f"; {name}: {len(order)} ops, model {t} cycles, stalls {st}", file=sys.stderr)
        self.out += order

    def switch(self):
        c = self.cfg
        s = self.seq
        self.stamp()
        s("s_nop 3")
        for ch in range(12): s(f"v_add_f32 v{V_SQ + 2*ch}, v{V_SQ + 2*ch}, v{V_SQ + 2*ch + 1}")
        s("s_nop 1")
        for i in range(6): s(f"v_permlane32_swap_b32 v{V_SQ + 4*i}, v{V_SQ + 4*i + 2}")
        s(f"v_lshrrev_b32 v46, 2, v{V_LANE16}\nv_add_u32 v46, {SUMS}, v46")
        for i in range(6): s(f"v_add_f32 v{V_SQ + 4*i}, v{V_SQ + 4*i}, v{V_SQ + 4*i + 2}")
        for i in range(6): s(f"ds_add_f32 v46, v{V_SQ + 4*i} offset:{256 * i}")
        s(f"""
            v_lshlrev_b32 v47, 2, v0
            v_add_u32 v48, {SUMS}, v47
            s_waitcnt vmcnt(0) lgkmcnt(0)
            s_barrier
            ds_read_b32 v50, v48
            ds_read_b32 v51, v48 offset:1024
            v_readfirstlane_b32 s{S_T0}, v{V_FLAG}
            s_mov_b32 s{S_CNT}, 0
            s_cmp_eq_u32 s{S_T0}, 8
            s_cbranch_scc1 L_flag_ok
            L_flag_poll:
            buffer_load_dword v{V_FLAG}, v{V_CB}, {srd(S_DBG)}, 0 offen sc1
            s_add_u32 s{S_CNT}, s{S_CNT}, 1
            s_waitcnt vmcnt(0)
            v_readfirstlane_b32 s{S_T0}, v{V_FLAG}
            s_cmp_gt_u32 s{S_CNT}, 0x40000
            s_cbranch_scc1 L_flag_ok
            s_cmp_eq_u32 s{S_T0}, 8
            s_cbranch_scc0 L_flag_poll
            L_flag_ok:
            s_lshl_b32 s{S_T0}, s{S_SHARD}, 11
            s_waitcnt lgkmcnt(0)
            buffer_atomic_add_f32 v50, v47, {srd(S_WS)}, s{S_T0} offen
            s_cmp_ge_u32 s{S_WAVE}, 2
            s_cbranch_scc1 L_at_done
            buffer_atomic_add_f32 v51, v47, {srd(S_WS)}, s{S_T0} offen offset:1024
            L_at_done:
        """)
        for k in range(11):
            neg = k >= 6
            i0 = 256 * k - (TP_DW if neg else 0)
            s(f"""
                v_add_u32 v50, {i0}, v0
                v_min_u32 v50, {(TN_DW if neg else TP_DW) - 1}, v50
                v_lshlrev_b32 v50, 2, v50
                v_add_u32 v50, {TN if neg else TP}, v50
                ds_write_b32 v50, a{A_TAB + k}
            """)
        s(f"""
            s_waitcnt vmcnt(0)
            s_barrier
            s_cmp_lg_u32 s{S_WAVE}, 0
            s_cbranch_scc1 L_arrived
            v_lshlrev_b32 v50, 7, v{V_LANE16}
            s_lshl_b32 s{S_T0}, s{S_SHARD}, 8
            s_add_u32 s{S_T0}, s{S_T0}, 0x10000
            v_mov_b32 v51, 1
            s_mov_b64 exec, 0xff
            buffer_atomic_add v51, v50, {srd(S_WS)}, s{S_T0} offen
            s_mov_b64 exec, -1
            L_arrived:
        """)
        s(f"""
            v_lshrrev_b32 v46, 4, v{V_LANE16}
            v_lshrrev_b32 v47, 5, v46
            v_bfe_u32 v48, v46, 2, 2
            v_lshl_add_u32 v48, v47, 2, v48
            v_mul_u32_u24 v48, 6, v48
            v_bfe_u32 v49, v46, 4, 1
            v_lshlrev_b32 v49, 4, v49
            v_and_b32 v50, 1, v46
            v_lshl_add_u32 v49, v50, 3, v49
            v_bfe_u32 v50, v46, 1, 1
            v_lshl_add_u32 v49, v50, 2, v49
            v_lshlrev_b32 v49, 1, v49
            s_mul_i32 s{S_T0}, s{S_WAVE}, 3
            s_cmp_ge_u32 s{S_WAVE}, 2
            s_cselect_b32 s{S_T1}, 186, 0
            s_add_u32 s{S_T0}, s{S_T0}, s{S_T1}
            v_add_u32 v48, s{S_T0}, v48
        """)
        for cl in range(3):
            for ks in range(2):
                for jh in range(2):
                    s(f"""
                        v_add_u32 v50, {cl + 6 * (16 * ks + 8 * jh)}, v48
                        v_cmp_gt_u32 vcc, 112, v50
                        v_mul_u32_u24 v50, 192, v50
                        v_mov_b32 v51, {100096 - 112 * 192}
                        v_mov_b32 v52, 71680
                        v_cndmask_b32 v51, v51, v52, vcc
                        v_add3_u32 v50, v50, v51, v49
                    """)
                    for blk in range(3):
                        f = (cl * 2 + ks) * 3 + blk
                        s(f"ds_read_b64_tr_b16 {v(160 + 4*f + 2*jh, 2)}, v50 offset:{64 * blk}")
        s(f"""
            s_mul_i32 s{S_T0}, s{S_WAVE}, 192
            v_lshlrev_b32 v50, 3, v47
            v_add_u32 v50, s{S_T0}, v50
            v_add_u32 v51, {SUMS}, v50
            v_add_u32 v50, {BVEC}, v50
        """)
        for cl in range(3):
            for ks in range(2):
                for jh in range(2):
                    s(f"ds_read_b64 {v(102 + 4*(cl*2+ks) + 2*jh, 2)}, v50 offset:{2 * (32*cl + 16*ks + 8*jh)}")
        for blk in range(3):
            for g in range(6):
                s(f"v_mfma_f32_32x32x16_bf16 {v(62,16)}, {v(102 + 4*g,4)}, {v(160 + 4*(3*g+blk),4)}, {'0' if g == 0 else v(62,16)}")
            s(f"v_mov_b32 v{56 + blk}, v62")
        s(f"""
            v_and_b32 v52, 31, v46
            v_lshlrev_b32 v52, 2, v52
            v_add_u32 v52, {BIASV}, v52
            s_mov_b32 exec_hi, 0
            ds_add_f32 v52, v56
            ds_add_f32 v52, v57 offset:128
            ds_add_f32 v52, v58 offset:256
            s_mov_b64 exec, -1
        """)
        for r in range(72):
            s(f"""
                v_lshlrev_b32 v{54 + 2*(r&1)}, 16, v{160 + r}
                v_and_b32 v{55 + 2*(r&1)}, 0xffff0000, v{160 + r}
                v_cvt_pk_f16_f32 v{160 + r}, v{54 + 2*(r&1)}, v{55 + 2*(r&1)}
            """)
        s(f"""
            v_and_b32 v53, 31, v46
            v_bfe_u32 v54, v53, 2, 1
            v_lshrrev_b32 v55, 3, v53
            v_cmp_eq_u32 vcc, v54, v47
            v_mov_b32 v54, 7
            v_cndmask_b32 v55, v54, v55, vcc
            v_mov_b32 v56, 0x3f80
        """)
        for g in range(4):
            s(f"""
                v_cmp_eq_u32 vcc, {g}, v55
                v_cndmask_b32 v57, 0, v56, vcc
                v_accvgpr_write_b32 a{A_ID + g}, v57
            """)
        s(f"""
            v_mov_b32 v56, 0x3f803f80
            v_cmp_eq_u32 vcc, 0, v47
            v_cndmask_b32 v57, 0, v56, vcc
            s_waitcnt lgkmcnt(0)
            v_accvgpr_write_b32 a{A_ONES}, v57
            v_accvgpr_write_b32 a{A_ONES+1}, 0
            v_accvgpr_write_b32 a{A_ONES+2}, 0
            v_accvgpr_write_b32 a{A_ONES+3}, 0
            v_mul_u32_u24 v53, 192, v53
            v_lshl_add_u32 v{V_CA}, v47, 5, v53
            v_lshl_add_u32 v{V_CB}, v47, 4, v53
        """)
        s(f"""
            s_cmp_lg_u32 s{S_WAVE}, 0
            s_cbranch_scc1 L_released
            s_lshr_b32 s{S_T0}, s2, 3
            s_and_b32 s{S_T0}, s{S_T0}, 7
            s_lshl_b32 s{S_T0}, s{S_T0}, 11
            s_add_u32 s{S_T0}, s{S_T0}, 0x10000
            v_and_b32 v53, 7, v46
            v_lshlrev_b32 v53, 8, v53
            s_mov_b32 s{S_CNT}, 0
            L_poll:
            buffer_load_dword v54, v53, {srd(S_WS)}, s{S_T0} offen sc1
            s_add_u32 s{S_CNT}, s{S_CNT}, 1
            s_waitcnt vmcnt(0)
            v_cmp_ne_u32 vcc, 32, v54
            s_cmp_gt_u32 s{S_CNT}, 0x40000
            s_cbranch_scc1 L_released
            s_cbranch_vccnz L_poll
            L_released:
            s_waitcnt vmcnt(0) lgkmcnt(0)
            s_barrier
        """)
        self.stamp()
        s(f"""
            v_min_u32 v53, 47, v46
            v_lshlrev_b32 v53, 3, v53
            s_mul_i32 s{S_T0}, s{S_WAVE}, 384
            v_add_u32 v53, s{S_T0}, v53
        """)
        for j in range(8):
            s(f"s_movk_i32 s{S_T1}, {2048 * (j & ~1)}" if not j & 1 else "s_nop 0")
            s(f"buffer_load_dwordx2 {v(62 + 2*j, 2)}, v53, {srd(S_WS)}, s{S_T1} offen offset:{2048 * (j & 1)} sc1")
        for blk in range(3): s(f"ds_read_b32 v{56 + blk}, v52 offset:{128 * blk}")
        for blk in range(3):
            s(f"""
                v_cvt_pk_bf16_f32 v59, v{56 + blk}, v{56 + blk}
                v_lshlrev_b32 v59, 16, v59
                v_sub_f32 v59, v{56 + blk}, v59
                v_cvt_pk_bf16_f32 v59, v{56 + blk}, v59
                v_accvgpr_write_b32 a{A_BIAS + 2*blk}, v59
                v_accvgpr_write_b32 a{A_BIAS + 2*blk + 1}, 0
            """)
        s(f"v_accvgpr_write_b32 a{A_BIAS + 6}, 0\nv_accvgpr_write_b32 a{A_BIAS + 7}, 0")
        for j in range(1, 8): s(f"v_pk_add_f32 v[62:63], v[62:63], {v(62 + 2*j, 2)}")
        s(f"""
            v_mov_b32 v64, {f32(1e-6)}
            v_fmac_f32 v64, {f32(1 / (CS * CS))}, v62
            v_mov_b32 v65, {f32(1e-6)}
            v_fmac_f32 v65, {f32(1 / (CS * CS))}, v63
            v_sqrt_f32 v64, v64
            v_sqrt_f32 v65, v65
            v_cmp_gt_u32 vcc, 48, v46
            v_add_f32 v66, v64, v65
            v_cndmask_b32 v66, 0, v66, vcc
            v_add_f32_dpp v66, v66, v66 row_shr:1 row_mask:0xf bank_mask:0xf bound_ctrl:1
            v_add_f32_dpp v66, v66, v66 row_shr:2 row_mask:0xf bank_mask:0xf bound_ctrl:1
            v_add_f32_dpp v66, v66, v66 row_shr:4 row_mask:0xf bank_mask:0xf bound_ctrl:1
            v_add_f32_dpp v66, v66, v66 row_shr:8 row_mask:0xf bank_mask:0xf bound_ctrl:1
            s_nop 1
            v_readlane_b32 s{S_T0}, v66, 15
            v_readlane_b32 s{S_T1}, v66, 31
            v_readlane_b32 s{S_T2}, v66, 47
            v_mov_b32 v66, s{S_T0}
            v_add_f32 v66, s{S_T1}, v66
            v_add_f32 v66, s{S_T2}, v66
            s_lshl_b32 s{S_T0}, s{S_WAVE}, 2
            s_add_u32 s{S_T0}, s{S_T0}, {MEANP}
            v_mov_b32 v67, s{S_T0}
            v_mov_b32 v68, {MEANP}
            ds_write_b32 v67, v66
            s_waitcnt lgkmcnt(0)
            s_barrier
            ds_read_b128 v[70:73], v68
            v_min_u32 v53, 47, v46
            v_lshlrev_b32 v53, 2, v53
            s_mul_i32 s{S_T0}, s{S_WAVE}, 192
            s_add_u32 s{S_T0}, s{S_T0}, {SUMS}
            v_add_u32 v53, s{S_T0}, v53
            v_add_f32 v70, v70, v71
            v_add_f32 v72, v72, v73
            v_add_f32 v70, v70, v72
            v_mov_b32 v71, {f32(1e-6)}
            v_fmac_f32 v71, {f32(1 / 384)}, v70
            v_rcp_f32 v71, v71
            v_mul_f32 v64, v64, v{V_G}
            v_mul_f32 v65, v65, v{V_G+1}
            v_fma_f32 v64, v64, v71, 1.0
            v_fma_f32 v65, v65, v71, 1.0
            v_mul_f32 v64, {f32(1 / CS)}, v64
            v_mul_f32 v65, {f32(1 / CS)}, v65
            v_cvt_pk_f16_f32 v64, v64, v65
            ds_write_b32 v53, v64
            s_waitcnt lgkmcnt(0)
        """)
        for cl in range(3):
            for ks in range(2):
                for jh in range(2):
                    s(f"ds_read_b64 {v(102 + 4*(cl*2+ks) + 2*jh, 2)}, v51 offset:{2 * (32*cl + 16*ks + 8*jh)}")
        s(f"s_mul_i32 s{S_T0}, s{S_WAVE}, 18")
        for f in range(18):
            for t in range(4):
                s(f"v_pk_mul_f16 v{160 + 4*f + t}, v{160 + 4*f + t}, v{102 + 4*(f//3) + t}")
            s(f"""
                s_add_u32 s{S_T1}, s{S_T0}, {f}
                s_cmp_ge_u32 s{S_T1}, 21
                s_cselect_b32 s{S_T2}, {100096 - 21 * 1024 - 71680}, 0
                s_add_u32 s{S_T1}, s{S_T1}, 70
                s_lshl_b32 s{S_T1}, s{S_T1}, 10
                s_add_u32 s{S_T1}, s{S_T1}, s{S_T2}
                v_add_u32 v{54 + (f & 1)}, s{S_T1}, v{V_LANE16}
                ds_write_b128 v{54 + (f & 1)}, {v(160 + 4*f, 4)}
            """)
        s("s_waitcnt lgkmcnt(0)\ns_barrier")
        self.stamp()

    def phase2(self):
        c = self.cfg
        YB = [8, 16, 24, 32]
        XB = [40, 48]
        POOL = [86, 102, 118, 134] + ([] if c.pool2 < 5 else [None])
        POOL = POOL[:4]
        slots = []
        ny = nb = 0
        for p in range(4):
            for ch in range(12):
                for t in range(2):
                    u = len(slots)
                    k = self.lut1[ch]
                    d = dict(kind=k, acc=POOL[u % len(POOL)], p=p, c=ch, t=t, A=YB[ny % len(YB)]); ny += 1
                    if k == "C":
                        d["B"] = V_B + 8 * (nb % 2); nb += 1
                    slots.append(d)
        f1, f2 = {}, {}
        cnt = dict(w1=0, w2=0, x=0)
        def g1(u):
            sl = slots[u]; r = []
            for ks in range(6):
                if sl["t"] == 0:
                    op, f1[ks] = self.w_read(w1_addr(6 * sl["c"] + ks), cnt["w1"] % 6, "D1"); cnt["w1"] += 1
                    r.append(op)
                cc = "0" if ks == 0 else v(sl["acc"], 16)
                r.append(Op(f"v_mfma_f32_32x32x16_bf16 {v(sl['acc'],16)}, {a(f1[ks],4)}, {a(A_LN + 48*sl['p'] + 24*sl['t'] + 4*ks,4)}, {cc}", stream="M1"))
            return r
        def xload(p, k):
            t, blk = divmod(k, 3)
            b = XB[(6 * p + k) % 2]
            return [Op(f"buffer_load_dwordx4 {v(b + 4*q,4)}, v{V_CA}, {srd(S_X)}, s{S_ROW + 2*p + t} offen offset:{64*blk + 16*q} {c.xpol2}",
                       stream="DX", lat=c.x_lat) for q in range(2)]
        def resid(p, k):
            t, blk = divmod(k, 3)
            b = XB[(6 * p + k) % 2]
            acc = V_Y + 48 * t + 16 * blk
            return [Op(f"v_smfmac_f32_32x32x32_bf16 {v(acc,16)}, {a(A_ID,4)}, {v(b,8)}, v{V_IDX}", stream="MR")]
        seen2 = {}
        def g2(u):
            sl = slots[u]; r = []
            p, t, ch = sl["p"], sl["t"], sl["c"]
            n = seen2.get(p, 0); seen2[p] = n + 1
            if n == 0:
                for tt in range(2):
                    for blk in range(3):
                        r.append(Op(f"v_mfma_f32_32x32x16_bf16 {v(V_Y + 48*tt + 16*blk,16)}, {a(A_BIAS + 2*blk,4)}, {a(A_ONES,4)}, 0", stream="M2"))
            for ks in range(2):
                for blk in range(3):
                    key = (p, ch, ks, blk)
                    if key not in f2:
                        op, f2[key] = self.w_read(w2_addr((ch * 2 + ks) * 3 + blk), 6 + cnt["w2"] % 6, "D2"); cnt["w2"] += 1
                        r.append(op)
                    acc = v(V_Y + 48 * t + 16 * blk, 16)
                    r.append(Op(f"v_mfma_f32_32x32x16_f16 {acc}, {a(f2[key],4)}, {v(sl['A'] + 4*ks,4)}, {acc}", stream="M2"))
            if n % 4 == 2:
                k = n // 4
                for o in resid(p, k):
                    o.stream = "M2"; r.append(o)
                nk = 6 * p + k + 2
                if nk < 24: r += xload(nk // 6, nk % 6)
            if n == 23:
                for tt in range(2):
                    base = V_Y + 48 * tt
                    for k in range(24):
                        r.append(Op(f"v_cvt_pk_bf16_f32 v{base + k}, v{base + 2*k}, v{base + 2*k + 1}", stream="VE"))
                        if k % 4 == 3:
                            r.append(Op(f"buffer_store_dwordx4 {v(base + k - 3,4)}, v{V_CB}, {srd(S_OUT)}, s{S_ROW + 2*p + tt} offen offset:{8 * (k - 3)} {c.opol}", stream="DS"))
            return r
        ops = xload(0, 0) + xload(0, 1)
        ops += self.act_stream(slots, 2, g1, g2)
        self.run(ops, ["M1", "M2"], ["VE", "VN", "VT"], ["DG", "D1", "D2", "DS", "DX"], [], "phase2")

    def dump_ln(self):
        s = self.seq
        s(f"""
            s_lshl_b32 s{S_T0}, s2, 2
            s_add_u32 s{S_T0}, s{S_T0}, s{S_WAVE}
            s_mul_i32 s{S_T0}, s{S_T0}, {192 * 256}
            s_add_u32 s{S_T0}, s{S_T0}, 0x100000
            v_lshrrev_b32 v46, 2, v{V_LANE16}
        """)
        for r in range(192):
            s(f"buffer_store_dword a{r}, v46, {srd(S_WS)}, s{S_T0} offen offset:{(r % 16) * 256}")
            if r % 16 == 15: s(f"s_add_u32 s{S_T0}, s{S_T0}, 4096\ns_waitcnt vmcnt(0)")

    def dump_stamps(self):
        s = self.seq
        s(f"""
            s_lshl_b32 s{S_T0}, s2, 2
            s_add_u32 s{S_T0}, s{S_T0}, s{S_WAVE}
            s_lshl_b32 s{S_T0}, s{S_T0}, 8
            s_add_u32 s{S_T0}, s{S_T0}, 0x20000
            v_lshrrev_b32 v46, 2, v{V_LANE16}
            buffer_store_dword v{self.cfg.stamp_reg}, v46, {srd(S_WS)}, s{S_T0} offen
        """)

    def build(self):
        c = self.cfg
        self.prologue()
        self.phase1()
        if c.dump: self.dump_ln()
        self.switch()
        self.phase2()
        if c.stamps:
            self.stamp()
            self.seq("s_waitcnt vmcnt(0)")
            self.stamp()
            self.dump_stamps()
        self.seq("L_last:\ns_endpgm")
        seq, t = finalize(self.out)
        nb = sum(o.nbytes for o in seq)
        print(f"; total {len(seq)} instrs, {nb} bytes, model {t} cycles, waits {sum(o.kind == 'wait' for o in seq)}, nops {sum(o.cost // 4 for o in seq if o.kind == 'nop')}", file=sys.stderr)
        return seq, nb


HEADER = open("standalone__modern_conv_block_slak__vision.s.ref").read().split("; Override launch")[0]


def main():
    ap = argparse.ArgumentParser()
    ap.add_argument("-o", default="standalone__modern_conv_block_slak__vision.s")
    ap.add_argument("--lut1", default="LCLCLCLCLCLL")
    ap.add_argument("--nosched", action="store_true")
    ap.add_argument("--dump", action="store_true")
    ap.add_argument("--stamps", action="store_true")
    ap.add_argument("--noprefetch", dest="prefetch", action="store_false")
    ap.add_argument("--xpol", default="")
    ap.add_argument("--xpol2", default="")
    ap.add_argument("--opol", default="")
    ap.add_argument("--pool1", type=int, default=3)
    ap.add_argument("--pool2", type=int, default=4)
    ap.add_argument("--l_lag", type=int, default=2)
    ap.add_argument("--dlimit", type=int, default=2)
    ap.add_argument("--dma_lat", type=int, default=3500)
    ap.add_argument("--x_lat", type=int, default=2500)
    cfg = ap.parse_args()
    cfg.ws_bytes = 0x4000000 if cfg.dump else (0x80000 if cfg.stamps else 0x20000)
    cfg.stamp_reg = 150
    g = Gen(cfg)
    seq, nb = g.build()
    body = "\n".join(o.text for o in seq).replace("CODE_BYTES", str(nb - 0))
    txt = HEADER + f"""; @launch grid=(256,1,1) block=(256,1,1) lds={LDS_TOTAL}
.amdgcn_target "amdgcn-amd-amdhsa--gfx950"
.text
.globl {NAME}
.p2align 8
.type {NAME},@function
{NAME}:
{body}
.section .rodata,"a"
.p2align 6
.amdhsa_kernel {NAME}
  .amdhsa_next_free_vgpr 512
  .amdhsa_next_free_sgpr 102
  .amdhsa_accum_offset 256
  .amdhsa_group_segment_fixed_size 0
  .amdhsa_kernarg_size 72
  .amdhsa_user_sgpr_count 2
  .amdhsa_user_sgpr_kernarg_segment_ptr 1
  .amdhsa_system_sgpr_workgroup_id_x 1
  .amdhsa_float_denorm_mode_32 3
.end_amdhsa_kernel
"""
    open(cfg.o, "w").write(txt)


if __name__ == "__main__":
    main()
```

```python
import re

REG_RE = re.compile(r"^(-|\|)?\|?([vas])(\d+)\|?$")
RNG_RE = re.compile(r"^(-|\|)?\|?([vas])\[(\d+):(\d+)\]\|?$")


def regs_of(tok):
    tok = tok.strip()
    if tok.startswith("abs(") or tok.startswith("-abs("):
        tok = tok[tok.index("(") + 1:-1]
    m = REG_RE.match(tok)
    if m:
        return [(m.group(2), int(m.group(3)))]
    m = RNG_RE.match(tok)
    if m:
        return [(m.group(2), i) for i in range(int(m.group(3)), int(m.group(4)) + 1)]
    if tok == "vcc":
        return [("s", "vcc")]
    if tok == "m0":
        return [("s", "m0")]
    if tok == "exec":
        return [("s", "exec")]
    return []


TRANS = ("v_exp_", "v_rcp_", "v_rsq_", "v_sqrt_", "v_log_")
WINDOW = ("v_pk_add_f32", "v_pk_mul_f32", "v_pk_fma_f32", "v_dot2")
RMW = ("v_fmac_", "v_dot2c_", "v_pk_fmac")
VOP12 = ("v_mov_b32", "v_add_f32", "v_sub_f32", "v_subrev_f32", "v_mul_f32", "v_fmac_f32", "v_max_f32", "v_min_f32",
         "v_and_b32", "v_or_b32", "v_xor_b32", "v_lshlrev_b32", "v_lshrrev_b32", "v_ashrrev_i32", "v_add_u32",
         "v_sub_u32", "v_subrev_u32", "v_exp_f32", "v_rcp_f32", "v_rsq_f32", "v_sqrt_f32", "v_exp_f16", "v_rcp_f16",
         "v_dot2c_f32_f16", "v_dot2c_f32_bf16", "v_permlane32_swap_b32", "v_mul_u32_u24", "v_readfirstlane_b32",
         "v_cndmask_b32", "v_min_u32", "v_max_u32", "v_cvt_f32_u32", "v_cvt_f32_f16", "v_cvt_f16_f32", "v_log_f32")
INLINE = {"0", "0.5", "-0.5", "1.0", "-1.0", "2.0", "-2.0", "4.0", "-4.0"} | {str(i) for i in range(-16, 65)}


class Op:
    __slots__ = ("text", "mn", "kind", "defs", "uses", "nbytes", "tw", "tr", "stream", "srcc", "ab", "sdwa_dst",
                 "trans", "cost", "idx", "preds", "t_issue", "note", "lat", "wide_store", "dpp", "earliest")

    def __init__(self, text, tw=(), tr=(), stream=None, kind=None, lat=None):
        self.text = text.strip()
        self.tw = set(tw)
        self.tr = set(tr)
        self.stream = stream
        self.srcc = []
        self.ab = []
        self.sdwa_dst = False
        self.trans = False
        self.wide_store = False
        self.dpp = False
        self.note = None
        self.lat = lat
        self.earliest = 0
        self.preds = []
        self.t_issue = None
        t = self.text
        if t.endswith(":"):
            self.mn = "label"; self.kind = "label"; self.defs = []; self.uses = []; self.nbytes = 0; self.cost = 0
            return
        parts = t.split(None, 1)
        mn = self.mn = parts[0]
        rest = parts[1] if len(parts) > 1 else ""
        ops = []
        depth = 0; cur = ""
        for ch in rest:
            if ch in "[(": depth += 1
            if ch in "])": depth -= 1
            if ch == "," and depth == 0:
                ops.append(cur.strip()); cur = ""
            else:
                cur += ch
        mods = ""
        cur = cur.strip()
        if cur:
            sp = cur.split(None, 1)
            ops.append(sp[0])
            mods = sp[1] if len(sp) > 1 else ""
        R = [regs_of(o) for o in ops]
        flat = lambda l: [r for x in l for r in x]
        defs, uses = [], []
        nbytes, cost = 8, 4
        if mn.startswith("v_mfma"):
            k = "m"; defs = R[0]; uses = flat(R[1:]); self.srcc = R[3]; self.ab = R[1] + R[2]; cost = 8
        elif mn.startswith("v_smfmac"):
            k = "m"; defs = R[0]; uses = flat(R); self.srcc = R[0]; self.ab = R[1] + R[2] + R[3]; cost = 12
        elif mn.startswith("v_"):
            k = "v"
            base = mn.replace("_e32", "").replace("_e64", "").replace("_sdwa", "").replace("_dpp", "")
            defs = R[0]; uses = flat(R[1:])
            if base.startswith(RMW) or "UNUSED_PRESERVE" in mods:
                uses = uses + R[0]
            if base.startswith("v_permlane"):
                defs = R[0] + R[1]; uses = R[0] + R[1]; cost = 8
            if base.startswith(("v_add_co", "v_sub_co", "v_addc_co")):
                defs = R[0] + R[1]; uses = flat(R[2:])
            if "dst_sel:WORD" in mods or "dst_sel:BYTE" in mods:
                self.sdwa_dst = True
            if base.startswith(TRANS):
                self.trans = True; cost = 8
            if base.startswith(WINDOW):
                k = "pk"
            if "_dpp" in mn or "row_" in mods or "quad_perm" in mods or "wave_" in mods:
                self.dpp = True
                if base.startswith(("v_mov",)) and "bound_ctrl" not in mods:
                    uses = uses + R[0]
            lit = any((not regs_of(o)) and o not in INLINE and not o.startswith("vcc") for o in ops[1:])
            plain = base in VOP12 and not mods and "_sdwa" not in mn and "_e64" not in mn and "_dpp" not in mn
            if plain and any(o.startswith(("-v", "|", "abs", "-abs", "-s")) for o in ops[1:]):
                plain = False
            if plain and len(ops) >= 3 and not base.startswith(("v_readfirst", "v_permlane")) and not (R[2] and R[2][0][0] == "v"):
                plain = False
            if plain and base == "v_cndmask_b32" and ops[3] != "vcc":
                plain = False
            if base.startswith("v_cmp"):
                plain = ops[0] == "vcc" and not mods and R[2] and R[2][0][0] == "v"
            nbytes = (8 if lit else 4) if plain else 8
        elif mn.startswith("ds_"):
            if mn.startswith(("ds_read", "ds_bpermute", "ds_swizzle")) or "_rtn" in mn:
                k = "dsr"; defs = R[0]; uses = flat(R[1:])
            else:
                k = "dsw"; uses = flat(R); cost = 20 if "b128" in mn else (8 if "b64" in mn else 4)
        elif mn.startswith(("buffer_load", "global_load")):
            if " lds" in (" " + mods) or "_lds_" in mn:
                k = "dma"; uses = flat(R) + [("s", "m0")]; cost = 12
            else:
                k = "vld"; defs = R[0]; uses = flat(R[1:]); cost = 12
        elif mn.startswith(("buffer_store", "global_store")):
            k = "vst"; uses = flat(R); cost = 24
            self.wide_store = "x3" in mn or "x4" in mn
            self.ab = R[0] if mn.startswith("buffer") else R[1]
        elif mn.startswith(("buffer_atomic", "global_atomic")):
            k = "vst"; uses = flat(R); cost = 12
            if "sc0" in mods:
                k = "vld"; defs = R[0]
        elif mn.startswith(("buffer_wbl2", "buffer_inv")):
            k = "vst"; cost = 12
        elif mn == "s_barrier":
            k = "bar"; nbytes = 4
        elif mn == "s_waitcnt":
            k = "wait"; nbytes = 4
        elif mn == "s_nop":
            k = "nop"; nbytes = 4; cost = 4 * (int(ops[0]) + 1)
        elif mn.startswith(("s_cbranch", "s_branch", "s_endpgm", "s_setpc")):
            k = "br"; nbytes = 4; uses = flat(R)
            if "vcc" in mn: uses = uses + [("s", "vcc")]
            if "scc" in mn: uses = uses + [("s", "scc")]
        elif mn.startswith(("s_load", "s_memtime", "s_memrealtime")):
            k = "smem"; defs = R[0]; uses = flat(R[1:])
        elif mn.startswith("s_"):
            k = "s"
            if mn.startswith(("s_cmp", "s_setprio", "s_sleep", "s_bitcmp")):
                uses = flat(R)
            else:
                defs = R[0]; uses = flat(R[1:])
                if "saveexec" in mn:
                    defs = defs + [("s", "exec")]; uses = uses + [("s", "exec")]
            if mn.startswith(("s_cselect", "s_addc", "s_subb")): uses = uses + [("s", "scc")]
            if not mn.startswith(("s_mov", "s_mul", "s_cselect", "s_setprio", "s_sleep", "s_getpc", "s_getreg")):
                defs = defs + [("s", "scc")]
            lit = any((not regs_of(o)) and o not in INLINE for o in ops[1:])
            nbytes = 8 if (lit and not mn.startswith(("s_movk", "s_setprio", "s_sleep", "s_getreg"))) else 4
        else:
            raise ValueError("unknown instruction: " + t)
        self.kind = kind or k
        self.defs = defs
        self.uses = uses
        self.nbytes = nbytes
        self.cost = cost

    def __repr__(self):
        return self.text


IS_VALU = ("v", "pk")
IS_LDS = ("dsr", "dsw", "dsg")
IS_VM = ("vld", "vst", "dma")


class Machine:
    LDS_LAT = 110
    MLAT = 56
    SVC = {"dsr": 16, "dsg": 27, "dsw": 32}

    def __init__(self):
        self.t = 0
        self.last_m = -1000
        self.valu_end = -1000
        self.lds_free = 0
        self.fetch = 0

    def start_time(self, op):
        t = max(self.t, self.fetch)
        k = op.kind
        if k == "m":
            t = max(t, self.last_m + 32)
        elif k == "pk":
            t = max(t, self.last_m + 44)
        elif k in IS_LDS or k in IS_VM:
            t = max(t, self.valu_end + 8)
        return t

    def issue(self, op, t=None):
        t0 = self.start_time(op) if t is None else max(t, self.start_time(op))
        op.t_issue = t0
        self.t = t0 + op.cost
        self.fetch = max(self.fetch, t0 - 7) + (5 * op.nbytes + 7) // 8
        k = op.kind
        done = self.t
        if k == "m":
            self.last_m = t0
            done = t0 + self.MLAT
        elif k in IS_VALU:
            self.valu_end = self.t
        elif k in IS_LDS:
            s = max(self.lds_free, t0) + self.SVC[k]
            self.lds_free = s
            done = s + self.LDS_LAT
        elif k in IS_VM:
            done = t0 + (op.lat or 2500)
        return done


def build_deps(ops):
    last_w = {}
    readers = {}
    tokw = {}
    for i, op in enumerate(ops):
        op.idx = i
        p = {}
        for r in op.uses:
            if r in last_w:
                p[last_w[r]] = "raw"
        for r in op.defs:
            if r in last_w:
                p.setdefault(last_w[r], "waw")
            for j in readers.get(r, ()):
                if j != i:
                    p.setdefault(j, "war")
        for tk in op.tr:
            assert tk in tokw, ("token never written", tk, op.text)
            for j in tokw[tk]:
                p[j] = "raw"
        op.preds = [(ops[j], ty) for j, ty in p.items()]
        for r in op.uses:
            readers.setdefault(r, []).append(i)
        for r in op.defs:
            last_w[r] = i
            readers[r] = []
        for tk in op.tw:
            tokw.setdefault(tk, []).append(i)


def wait_states_between(seq, i, j):
    n = 0
    for k in range(i + 1, j):
        o = seq[k]
        if o.kind == "label":
            continue
        n += o.cost // 4 if o.kind == "nop" else 1
    return n


def required_states(p, c):
    need = 0
    pd, cu, cd = set(p.defs), set(c.uses), set(c.defs)
    pv = p.kind in IS_VALU
    cv = c.kind in IS_VALU
    if p.kind == "m":
        if c.kind == "m":
            if pd & set(c.ab): need = max(need, 12)
            if pd & set(c.srcc) and list(p.defs) != list(c.srcc): need = max(need, 10)
            if pd & cd and not (pd & set(c.srcc)) and list(p.defs) != list(c.defs): need = max(need, 10)
        elif (pd & (cu | cd)): need = max(need, 12)
        if cv and set(p.srcc) & cd: need = max(need, 7)
    if pv:
        vd = {r for r in pd if r[0] in "va"}
        sd = {r for r in pd if r[0] == "s"}
        if c.kind == "m" and vd & cu: need = max(need, 2)
        if cv:
            if p.trans and not c.trans and vd & cu: need = max(need, 1)
            if p.sdwa_dst and vd & (cu | cd): need = max(need, 1)
            if c.mn.startswith("v_permlane") and vd & cu: need = max(need, 2)
            if c.dpp and vd & cu: need = max(need, 2)
            if c.mn.startswith(("v_readfirstlane", "v_readlane")) and vd & cu: need = max(need, 1)
            if sd & cu: need = max(need, 4 if c.mn.startswith(("v_readlane", "v_writelane")) else 2)
            if p.mn.startswith("v_dot") and vd & (cu | cd):
                same = p.mn == c.mn and not (vd & (cu - cd))
                if not same: need = max(need, 3)
        if p.mn.startswith("v_dot") and not cv and vd & (cu | cd): need = max(need, 3)
        if c.kind in IS_VM and sd & cu: need = max(need, 5)
        if c.kind in ("s", "br", "smem") and sd & cu: need = max(need, 2)
        if ("s", "exec") in pd: need = max(need, 5)
    if p.wide_store and set(p.ab) & cd: need = max(need, 2)
    if p.kind == "dsw" and set(p.uses) & cd: need = max(need, 2)
    if p.kind == "s" and ("s", "m0") in pd and c.kind == "dma": need = max(need, 1)
    return need


def finalize(seq, cover=160, verbose=False):
    out = []
    mach = Machine()
    ldsq = []
    vmq = []
    smem = []
    nwait = nnop = 0

    def emit(op, t=None):
        done = mach.issue(op, t) if op.kind != "label" else 0
        out.append(op)
        return done

    seen = set()
    saved = {}
    maybe = set()
    for op in seq:
        if op.kind == "label":
            name = op.text[:-1]
            seen.add(name)
            for sl, sv, ss in saved.pop(name, []):
                def join(old, cur):
                    ids = {id(q) for q, _ in old}
                    inner = [e for e in cur if id(e[0]) not in ids]
                    for q, _ in inner: maybe.add(id(q))
                    return list(old) + inner
                ldsq = join(sl, ldsq); vmq = join(sv, vmq); smem = list(set(ss) | set(smem))
            out.append(op)
            continue
        if op.kind == "br" and op.mn.startswith(("s_cbranch", "s_branch")):
            tgt = op.text.split()[-1]
            if tgt not in seen:
                saved.setdefault(tgt, []).append((list(ldsq), list(vmq), list(smem)))
        if op.kind == "wait":
            m = re.search(r"lgkmcnt\((\d+)\)", op.text)
            tt = None
            if m:
                n = int(m.group(1))
                gone = ldsq[:len(ldsq) - n] if n else ldsq
                if gone: tt = max(d for _, d in gone)
                ldsq = ldsq[len(ldsq) - n:] if n else []
                if n == 0: smem = []
            m = re.search(r"vmcnt\((\d+)\)", op.text)
            if m:
                n = int(m.group(1))
                gone = vmq[:len(vmq) - n] if n else vmq
                if gone: tt = max(tt or 0, max(d for _, d in gone))
                vmq = vmq[len(vmq) - n:] if n else []
            emit(op)
            if tt: mach.t = max(mach.t, tt)
            continue
        touched = set(op.uses) | set(op.defs)
        need_l = -1
        for k, (q, _) in enumerate(ldsq):
            if (set(q.defs) & touched) or (q.tw & op.tr):
                need_l = k
        need_v = -1
        for k, (q, _) in enumerate(vmq):
            if (set(q.defs) & touched) or (q.tw & op.tr):
                need_v = k
        need_s = any(set(q.defs) & touched for q in smem)
        if need_l >= 0 or need_v >= 0 or need_s:
            txt = "s_waitcnt"
            tt = 0
            now = mach.t
            if need_v >= 0:
                k = need_v
                while k + 1 < len(vmq) and vmq[k + 1][1] + 1500 <= now: k += 1
                n = sum(1 for q, _ in vmq[k + 1:] if id(q) not in maybe)
                n = min(n, 63)
                txt += f" vmcnt({n})"
                tt = max(tt, vmq[need_v][1])
                vmq = vmq[k + 1:] if n < 63 else vmq[len(vmq) - 63:]
            if need_s:
                txt += " lgkmcnt(0)"
                if ldsq: tt = max(tt, ldsq[-1][1])
                ldsq = []; smem = []
            elif need_l >= 0:
                assert not smem
                k = need_l
                while k + 1 < len(ldsq) and ldsq[k + 1][1] + cover - 160 <= max(now, ldsq[need_l][1]): k += 1
                k = max(k, len(ldsq) - 16)
                n = sum(1 for q, _ in ldsq[k + 1:] if id(q) not in maybe)
                txt += f" lgkmcnt({n})"
                tt = max(tt, ldsq[need_l][1])
                ldsq = ldsq[k + 1:]
            emit(Op(txt))
            mach.t = max(mach.t, tt)
            nwait += 1
        need = 0
        dist = 0
        for k in range(len(out) - 1, max(-1, len(out) - 20), -1):
            p = out[k]
            if p.kind == "label":
                continue
            r = required_states(p, op)
            if r - dist > need: need = r - dist
            dist += p.cost // 4 if p.kind == "nop" else 1
            if dist >= 13: break
        if need > 0:
            emit(Op(f"s_nop {need - 1}"))
            nnop += need
        done = emit(op)
        if op.kind in IS_LDS: ldsq.append((op, done))
        elif op.kind in IS_VM: vmq.append((op, done))
        elif op.kind == "smem": smem.append(op)
    if verbose:
        print(f"; finalize: {len(out)} instrs, {sum(o.nbytes for o in out)} bytes, {nwait} waits, {nnop} nop states, est {mach.t} cycles")
    return out, mach.t


def schedule(ops, m_streams, v_streams, d_streams, x_streams=(), max_lds=12, trace=None, dlimit=2, gap=32):
    build_deps(ops)
    S = {}
    for op in ops:
        S.setdefault(op.stream, []).append(op)
    for s in S:
        assert s in m_streams or s in v_streams or s in d_streams or s in x_streams, s
    pos = {s: 0 for s in S}
    done = {}
    order = []
    mach = Machine()
    slot = {}
    lds_done = []
    rr = 0

    def head(s):
        return S[s][pos[s]] if s in S and pos[s] < len(S[s]) else None

    def ready(op):
        t = op.earliest
        for p, ty in op.preds:
            if p.idx not in done:
                return None
            if ty == "raw" or (ty == "waw" and p.kind != "v" and p.kind != "pk"):
                if p.kind == "m" and op.kind == "m" and list(p.defs) == list(op.srcc) and not (set(p.defs) & set(op.ab)):
                    continue
                if p.kind == "m" and op.kind == "m" and ty == "waw" and list(p.defs) == list(op.defs):
                    continue
                t = max(t, done[p.idx])
        return t

    def states_ok(op):
        dist = 0
        for k in range(len(order) - 1, max(-1, len(order) - 14), -1):
            if required_states(order[k], op) > dist:
                return False
            dist += 1
        return True

    def put(op, t=None):
        d = mach.issue(op, t)
        done[op.idx] = d
        slot[op.idx] = len(order)
        order.append(op)
        pos[op.stream] += 1
        if op.kind in IS_LDS:
            lds_done.append(d)

    def lds_out(now):
        n = 0
        for d in reversed(lds_done):
            if d > now: n += 1
            else: break
        return n

    def try_d(limit):
        n = 0
        progress = True
        while n < limit and progress:
            progress = False
            for s in d_streams:
                op = head(s)
                if op is None: continue
                r = ready(op)
                if r is None or r > mach.t + 4 or not states_ok(op): continue
                if op.kind in IS_LDS and (lds_out(mach.t) >= max_lds or mach.lds_free > mach.t + 200): continue
                put(op)
                if op.kind != "s": n += 1
                progress = True
                break
        return n

    def window_soon(horizon):
        for s in v_streams:
            if s not in S: continue
            t = 0
            k = pos[s]
            while k < len(S[s]) and t < horizon:
                o = S[s][k]
                if o.kind == "pk":
                    return True
                t += o.cost
                k += 1
        return False

    total = len(ops)
    while len(order) < total:
        now = max(mach.t, mach.fetch)
        did = False
        for s in x_streams:
            op = head(s)
            if op is None: continue
            r = ready(op)
            if r is not None and r <= now and states_ok(op):
                put(op); did = True
                break
        if did: continue
        vc = []
        for s in v_streams:
            op = head(s)
            if op is None: continue
            r = ready(op)
            if r is None: continue
            vc.append((s, op, r, states_ok(op)))
        pk_ready = [c for c in vc if c[1].kind == "pk" and c[2] <= now + 4 and c[3]]
        in_window = pk_ready and mach.last_m + 44 <= now
        if mach.last_m + gap <= now + 2 and not in_window:
            ms = list(m_streams[rr:]) + list(m_streams[:rr])
            for s in ms:
                op = head(s)
                if op is None: continue
                r = ready(op)
                if r is None or r > now + 4 or not states_ok(op): continue
                if pk_ready and op.note != "urgent": continue
                put(op)
                rr = (m_streams.index(s) + 1) % len(m_streams)
                try_d(dlimit)
                did = True
                break
        if did: continue
        best = None
        for s, op, r, ok in vc:
            if not ok or r > now + 4: continue
            if op.kind == "pk" and mach.last_m + 44 > now + 4: continue
            fetch_tight = mach.fetch > mach.t - 3
            light = op.cost == 8 or op.nbytes == 4
            score = v_streams.index(s)
            if op.kind == "pk": score -= 100
            if fetch_tight and light: score -= 10
            if not fetch_tight and op.cost == 8: score += 10
            if best is None or score < best[0]: best = (score, op)
        if best:
            put(best[1]); continue
        if try_d(1): continue
        cand = []
        for s in S:
            op = head(s)
            if op is None: continue
            r = ready(op)
            if r is None: continue
            st = max(r, mach.start_time(op))
            if op.kind in IS_LDS and lds_out(mach.t) >= 15: st = max(st, lds_done[-15])
            if not states_ok(op): st += 8
            cand.append((st, op.idx, op))
        assert cand, "deadlock in schedule: " + str({s: head(s) for s in S})
        st, _, op = min(cand)
        if trace is not None and st > now + 4:
            trace.append((now, st - now, op.stream, op.text))
        put(op, st)
        if op.kind == "m": try_d(dlimit)
    return order, mach.t
```

```python
import math, struct, sys, argparse
from asmlib import Op, finalize, schedule

NAME = "standalone__modern_conv_block_slak__vision_kernel"

K0 = -2.0 * math.sqrt(2.0 / math.pi) * math.log2(math.e)
K1 = K0 * 0.044715
CS = -(abs(K1) ** (1.0 / 3.0))
KK = K0 / CS


def f32(x): return "0x%08x" % struct.unpack("<I", struct.pack("<f", x))[0]
def f16bits(x): return struct.unpack("<H", struct.pack("<e", x))[0]


LDS_TOTAL = 163840
STG = [71680, 100096, 121856]
ROWB = 2176
CONVA = 143616
TP = 93952
TN = TP + 65536
TP_DW, TN_DW = 1536, 1088
SPARE = 93440
BVEC = 93184
SUMS = 155392
BIASV = SUMS + 1536
MEANP = BIASV + 384
assert MEANP + 16 <= 157440 and TN + TN_DW * 4 == LDS_TOTAL


def w1_addr(f): return f * 1024 if f < 70 else 157440 + (f - 70) * 1024
def w2_addr(f): return 71680 + f * 1024 if f < 21 else 100096 + (f - 21) * 1024
def raw2_addr(row): return 71680 + row * 192 if row < 112 else 100096 + (row - 112) * 192


S_X, S_OUT, S_WS, S_W1, S_W2, S_DW, S_G, S_B, S_DBG, S_CODE = 4, 8, 12, 16, 20, 24, 28, 32, 36, 40
S_KA = 44
S_WAVE, S_Y0, S_X0, S_T0, S_T1, S_T2, S_T3 = 62, 63, 64, 65, 66, 67, 68
S_M0 = 70
S_ROW = 76
S_K16, S_TBASE, S_SCALE, S_UNSC, S_DELTA, S_64, S_128, S_SHARD = 84, 85, 86, 87, 88, 89, 90, 91
S_SAVE = 92
S_ST = 94
S_MUL4 = 96
S_CNT = 97
S_W2M = 69


def srd(b): return f"s[{b}:{b+3}]"
def v(n, k=1): return f"v{n}" if k == 1 else f"v[{n}:{n+k-1}]"
def a(n, k=1): return f"a{n}" if k == 1 else f"a[{n}:{n+k-1}]"


V_TID = 0
V_LANE16 = 1
V_FB1 = 2
V_FB2 = 3
V_IDX = 4
V_CA = 5
V_CB = 6
V_DMA = 12
V_G = 18
V_BB = 20
V_FLAG = 21
V_SQ = 22
V_LN = 46
V_E = 62
V_B = 70
V_A = 86
V_POOL = 102
V_Y = 160

A_LN = 0
A_CVA = 144
A_CVB = 156
A_W = 192
A_ZERO = 240
A_TAB = 244
A_BIAS = 240
A_ONES = 248
A_ID = 252


class Gen:
    def __init__(self, cfg):
        self.cfg = cfg
        self.out = []
        self.lut1 = cfg.lut1
        self.nstamp = 0

    def seq(self, lines):
        for l in lines.strip().split("\n"):
            l = l.split(";")[0].strip()
            if l:
                self.out.append(Op(l))

    def stamp(self):
        if not self.cfg.stamps: return
        i = self.nstamp; self.nstamp += 1
        self.seq(f"""
            s_memtime s[{S_ST}:{S_ST+1}]
            s_waitcnt lgkmcnt(0)
            v_writelane_b32 v{self.cfg.stamp_reg}, s{S_ST}, {i}
            s_memrealtime s[{S_ST}:{S_ST+1}]
            s_waitcnt lgkmcnt(0)
            v_writelane_b32 v{self.cfg.stamp_reg}, s{S_ST}, {32 + i}
        """)

    def frag_base(self, addr):
        b = addr >> 16
        return (V_LANE16, V_FB1, V_FB2)[b], addr & 0xffff

    def prologue(self):
        c = self.cfg
        s = self.seq
        s(f"""
            s_cmp_ge_u32 s2, 0x100
            s_cbranch_scc0 L_go
            s_endpgm
            L_go:
            s_load_dwordx16 s[{S_KA}:{S_KA+15}], s[0:1], 0
            s_load_dwordx2 s[{S_KA+16}:{S_KA+17}], s[0:1], 64
            v_lshrrev_b32 v46, 6, v0
            v_and_b32 v47, 63, v0
            v_readfirstlane_b32 s{S_WAVE}, v46
            v_lshlrev_b32 v{V_LANE16}, 4, v47
            v_add_u32 v{V_FB1}, 0x10000, v{V_LANE16}
            v_add_u32 v{V_FB2}, 0x20000, v{V_LANE16}
            s_and_b32 s{S_SHARD}, s2, 7
            s_lshr_b32 s{S_T0}, s2, 3
            s_lshr_b32 s{S_T1}, s{S_T0}, 4
            s_lshl_b32 s{S_Y0}, s{S_SHARD}, 1
            s_add_u32 s{S_Y0}, s{S_Y0}, s{S_T1}
            s_lshl_b32 s{S_Y0}, s{S_Y0}, 5
            s_and_b32 s{S_X0}, s{S_T0}, 15
            s_lshl_b32 s{S_X0}, s{S_X0}, 5
            s_mov_b32 s{S_64}, 64
            s_movk_i32 s{S_128}, 0x80
            s_mov_b32 s{S_K16}, 0x{f16bits(KK):04x}{f16bits(KK):04x}
            s_mov_b32 s{S_TBASE}, {TP}
            s_mov_b32 s{S_DELTA}, 0
        """)
        if c.stamps:
            s(f"v_mov_b32 v{c.stamp_reg}, 0")
        self.stamp()
        s(f"""
            v_and_b32 v48, 31, v47
            v_lshrrev_b32 v49, 5, v47
        """)
        for k in range(6):
            s(f"""
                s_lshl_b32 s{S_T0}, s{S_WAVE}, 6
                s_add_u32 s{S_T0}, s{S_T0}, {256 * k}
                s_min_u32 s{S_T0}, s{S_T0}, 1296
                s_lshl_b32 s{S_M0+k}, s{S_T0}, 4
                v_add_u32 v50, s{S_T0}, v47
                v_mul_u32_u24 v51, 482, v50
                v_lshrrev_b32 v51, 16, v51
                v_mul_u32_u24 v52, 136, v51
                v_sub_u32 v52, v50, v52
                v_lshrrev_b32 v53, 2, v52
                v_and_b32 v52, 3, v52
                v_bfe_u32 v54, v53, 2, 2
                v_xor_b32 v52, v52, v54
                s_sub_u32 s{S_T1}, s{S_X0}, 1
                v_add_u32 v53, s{S_T1}, v53
                s_sub_u32 s{S_T2}, s{S_Y0}, 1
                v_add_u32 v51, s{S_T2}, v51
                v_lshl_add_u32 v51, v51, 9, v53
                s_movk_i32 s{S_T3}, 0xc0
                v_mul_lo_u32 v51, v51, s{S_T3}
                v_lshl_add_u32 v51, v52, 4, v51
                v_cmp_gt_u32 vcc, 0x200, v53
                v_mov_b32 v52, 0x80000000
                v_cndmask_b32 v{V_DMA+k}, v52, v51, vcc
            """)
        s("s_waitcnt lgkmcnt(0)")
        for base, ka, size in ((S_X, 0, 50331648), (S_DW, 1, 1728), (S_W1, 2, 73728), (S_W2, 3, 73728), (S_G, 4, 768),
                               (S_B, 5, 768), (S_OUT, 6, 50331648), (S_DBG, 7, 256), (S_WS, 8, c.ws_bytes)):
            s(f"""
                s_mov_b32 s{base}, s{S_KA+2*ka}
                s_and_b32 s{base+1}, s{S_KA+2*ka+1}, 0xffff
                s_mov_b32 s{base+2}, {size}
                s_mov_b32 s{base+3}, 0x20000
            """)
        if c.preread:
            pol = "" if c.preread == "def" else c.preread
            s(f"""
                s_lshl_b32 s{S_T0}, s2, 2
                s_add_u32 s{S_T0}, s{S_T0}, s{S_WAVE}
                s_mul_i32 s{S_T0}, s{S_T0}, 49152
            """)
            for k in range(48):
                s(f"buffer_load_dwordx4 {v(160 + 4 * (k % 24), 4)}, v{V_LANE16}, {srd(S_X)}, s{S_T0} offen offset:{1024 * (k % 4)} {pol}")
                if k % 4 == 3: s(f"s_add_u32 s{S_T0}, s{S_T0}, 4096")
            s("s_waitcnt vmcnt(0)")
        for q in range(3):
            for op in self.dma_ops(q, None): self.out.append(op)
        s(f"""
            v_mul_u32_u24 v50, 12, v48
            v_mul_u32_u24 v51, 3072, v49
            v_add_u32 v50, v50, v51
        """)
        for i in range(3):
            s(f"""
                s_mul_i32 s{S_T0}, s{S_WAVE}, 3
                s_add_u32 s{S_T0}, s{S_T0}, {i}
                s_lshr_b32 s{S_T1}, s{S_T0}, 1
                s_and_b32 s{S_T0}, s{S_T0}, 1
                s_mul_i32 s{S_T1}, s{S_T1}, {16 * 768}
                s_mul_i32 s{S_T0}, s{S_T0}, 384
                s_add_u32 s{S_T0}, s{S_T0}, s{S_T1}
                s_add_u32 s{S_T1}, s{S_T0}, {8 * 768}
            """)
            for j in range(8):
                s(f"buffer_load_dwordx3 {v(160 + 32 * i + 4 * j, 3)}, v50, {srd(S_W1)}, s{S_T0 if j < 4 else S_T1} offen offset:{(j & 3) * 768}")
        for k in range(4):
            s(f"""
                v_add_u32 v50, {256 * k}, v0
                v_lshrrev_b32 v51, 5, v50
                v_mul_u32_u24 v52, 57, v51
                v_lshrrev_b32 v52, 9, v52
                v_mul_u32_u24 v53, 9, v52
                v_sub_u32 v53, v51, v53
                v_mul_u32_u24 v53, 96, v53
                v_lshl_add_u32 v53, v52, 5, v53
                v_add_u32 v53, v53, v48
                v_lshlrev_b32 v53, 1, v53
                buffer_load_ushort v{102 + k}, v53, {srd(S_DW)}, 0 offen
            """)
        s(f"""
            v_min_u32 v50, 47, v47
            s_mul_i32 s{S_T0}, s{S_WAVE}, 96
            v_lshl_add_u32 v50, v50, 1, s{S_T0}
            v_lshrrev_b32 v51, 5, v50
            v_and_b32 v52, 31, v50
            v_mul_u32_u24 v52, 6, v52
            v_add_u32 v52, v52, v51
            v_cmp_lt_u32 vcc, 5, v51
            v_mov_b32 v53, 0
            v_mov_b32 v54, 186
            v_cndmask_b32 v53, v53, v54, vcc
            v_add_u32 v52, v52, v53
            v_lshlrev_b32 v52, 1, v52
            buffer_load_ushort v{V_G}, v52, {srd(S_G)}, 0 offen
            buffer_load_ushort v{V_G+1}, v52, {srd(S_G)}, 0 offen offset:12
            buffer_load_ushort v{V_BB}, v52, {srd(S_B)}, 0 offen
            buffer_load_ushort v{V_FLAG}, v52, {srd(S_B)}, 0 offen offset:12
        """)
        s(f"""
            s_cmp_ge_u32 s2, 8
            s_cbranch_scc1 L_noinit
            s_cmp_lg_u32 s{S_WAVE}, 0
            s_cbranch_scc1 L_noinit
            v_mov_b32 v52, 0
            v_mov_b32 v53, 0
            v_mov_b32 v54, 0
            v_mov_b32 v55, 0
            s_lshl_b32 s{S_T0}, s2, 11
            s_lshl_b32 s{S_T1}, s2, 8
            s_add_u32 s{S_T1}, s{S_T1}, 0x10000
            v_and_b32 v50, 7, v47
            v_lshlrev_b32 v50, 11, v50
            buffer_store_dwordx4 v[52:55], v{V_LANE16}, {srd(S_WS)}, s{S_T0} offen sc1
            buffer_store_dwordx4 v[52:55], v{V_LANE16}, {srd(S_WS)}, s{S_T0} offen offset:1024 sc1
            buffer_store_dword v52, v50, {srd(S_WS)}, s{S_T1} offen sc1
            s_waitcnt vmcnt(0)
            v_mov_b32 v52, 1
            v_mov_b32 v53, 0
            s_mov_b64 exec, 1
            buffer_atomic_add v52, v53, {srd(S_DBG)}, 0 offen
            s_mov_b64 exec, -1
            L_noinit:
        """)
        if c.prefetch:
            s(f"""
                s_getpc_b64 s[{S_CODE}:{S_CODE+1}]
                L_pc:
                s_and_b32 s{S_CODE+1}, s{S_CODE+1}, 0xffff
                s_mov_b32 s{S_CODE+2}, L_last-L_pc
                s_mov_b32 s{S_CODE+3}, 0x20000
                s_lshr_b32 s{S_T0}, s2, 3
                s_and_b32 s{S_T0}, s{S_T0}, 7
                s_lshl_b32 s{S_T0}, s{S_T0}, 2
                s_add_u32 s{S_T0}, s{S_T0}, s{S_WAVE}
                s_lshl_b32 s{S_T0}, s{S_T0}, 13
                v_lshlrev_b32 v50, 7, v47
                buffer_load_dword v106, v50, {srd(S_CODE)}, s{S_T0} offen
            """)
        s(f"""
            v_and_b32 v50, 3, v48
            v_xor_b32 v51, 1, v50
            v_lshl_or_b32 v50, v51, 2, v50
            v_mul_u32_u24 v{V_IDX}, 0x1111, v50
            v_bfe_u32 v50, v48, 3, 1
            v_lshlrev_b32 v51, 4, v48
            v_add_u32 v51, {CONVA}, v51
            v_cmp_eq_u32 vcc, v50, v49
            v_mov_b32 v52, 0x40000000
            v_cndmask_b32 v{V_CA}, v52, v51, vcc
            s_mul_i32 s{S_T0}, s{S_WAVE}, {2 * ROWB}
            s_add_u32 s{S_T0}, s{S_T0}, {STG[0]}
        """)
        for dx in range(3):
            for q in range(2):
                s(f"""
                    v_add_u32 v50, {dx}, v48
                    v_bfe_u32 v51, v50, 2, 2
                    v_lshl_or_b32 v52, v49, 1, {q}
                    v_xor_b32 v51, v51, v52
                    v_lshl_add_u32 v51, v50, 2, v51
                    v_lshl_add_u32 v{V_CB + 2 * dx + q}, v51, 4, s{S_T0}
                """)
        for p in range(4):
            for t in range(2):
                s(f"""
                    s_lshl_b32 s{S_T0}, s{S_WAVE}, 1
                    s_add_u32 s{S_T0}, s{S_T0}, s{S_Y0}
                    s_add_u32 s{S_T0}, s{S_T0}, {8 * p + t}
                    s_lshl_b32 s{S_T0}, s{S_T0}, 9
                    s_add_u32 s{S_T0}, s{S_T0}, s{S_X0}
                    s_mul_i32 s{S_ROW + 2 * p + t}, s{S_T0}, 0xc0
                """)
        s(f"""
            s_cmp_ge_u32 s{S_WAVE}, 1
            s_cselect_b32 s{S_W2M}, {100096 - 21 * 1024 - 71680}, 0
            s_lshl_b32 s{S_T0}, s{S_WAVE}, 10
            s_add_u32 s{S_T0}, s{S_T0}, {71680 + 5 * 4096}
            s_add_u32 s{S_W2M}, s{S_W2M}, s{S_T0}
        """)
        for r in range(4): s(f"v_accvgpr_write_b32 a{A_ZERO + r}, 0")
        for r in range(24): s(f"v_mov_b32 v{V_SQ + r}, 0")
        s(f"""
            v_lshrrev_b32 v50, 4, v48
            v_bfe_u32 v51, v48, 2, 1
            v_lshl_or_b32 v50, v50, 1, v51
            v_lshlrev_b32 v56, 4, v0
        """)
        for k in range(4):
            for g in range(4):
                s(f"""
                    v_cmp_eq_u32 vcc, {g}, v50
                    v_cndmask_b32 v{52 + g}, 0, v{102 + k}, vcc
                """)
            if k == 3:
                s(f"""
                    v_cmp_gt_u32 vcc, 96, v0
                    s_and_saveexec_b64 s[{S_SAVE}:{S_SAVE+1}], vcc
                    s_cbranch_execz L_ca_skip
                """)
            s(f"v_add_u32 v57, {CONVA + 4096 * k}, v56")
            s(f"ds_write_b128 v57, v[52:55]")
            if k == 3:
                s(f"""
                    s_waitcnt lgkmcnt(0)
                    L_ca_skip:
                    s_mov_b64 exec, s[{S_SAVE}:{S_SAVE+1}]
                """)
        s(f"v_lshl_or_b32 v{V_BB}, v{V_FLAG}, 16, v{V_BB}")
        s(f"v_lshlrev_b32 v{V_G}, 16, v{V_G}")
        s(f"v_lshlrev_b32 v{V_G+1}, 16, v{V_G+1}")
        raw = [160 + 4 * j + d for j in range(24) for d in range(3)]
        s("v_pk_maximum3_f16 v58, v160, v161, v161\nv_pk_minimum3_f16 v59, v160, v161, v161")
        for r in range(2, 72, 2):
            s(f"v_pk_maximum3_f16 v58, v58, v{raw[r]}, v{raw[r+1]}\nv_pk_minimum3_f16 v59, v59, v{raw[r]}, v{raw[r+1]}")
        s(f"""
            v_and_b32 v58, 0x7fff7fff, v58
            v_and_b32 v59, 0x7fff7fff, v59
            v_pk_max_u16 v58, v58, v59
            v_lshrrev_b32 v59, 16, v58
            v_and_b32 v58, 0xffff, v58
            v_max_u32 v58, v58, v59
            v_mov_b32 v59, {SPARE}
            v_mov_b32 v57, 0
            ds_write_b32 v59, v57
            s_waitcnt lgkmcnt(0)
            s_barrier
            ds_max_u32 v59, v58
            L_prep:
            s_add_u32 s{S_T0}, s{S_DELTA}, 112
            s_lshl_b32 s{S_T0}, s{S_T0}, 23
            s_sub_u32 s{S_SCALE}, {f32(-CS)}, s{S_T0}
            s_add_u32 s{S_UNSC}, 0x3f800000, s{S_T0}
        """)
        for k in range(11):
            neg = k >= 6
            i0 = 256 * k - (TP_DW if neg else 0)
            sg = "" if neg else "-"
            s(f"""
                v_add_u32 v50, {i0}, v0
                v_min_u32 v50, {(TN_DW if neg else TP_DW) - 1}, v50
                v_lshlrev_b32 v52, 17, v50
                v_or_b32 v52, 0x8000, v52
                v_add_u32 v53, 0x10000, v52
                v_mul_f32_e64 v52, {sg}v52, s{S_UNSC}
                v_mul_f32_e64 v53, {sg}v53, s{S_UNSC}
                v_fmaak_f32 v54, v52, v52, {f32(KK)}
                v_fmaak_f32 v55, v53, v53, {f32(KK)}
                v_mul_f32 v54, v52, v54
                v_mul_f32 v55, v53, v55
                v_exp_f32 v54, v54
                v_exp_f32 v55, v55
                v_lshlrev_b32 v50, 2, v50
                v_add_f32 v54, 1.0, v54
                v_add_f32 v55, 1.0, v55
                v_rcp_f32 v54, v54
                v_rcp_f32 v55, v55
                v_add_u32 v50, {TN if neg else TP}, v50
                v_mul_f32 v52, v52, v54
                v_mul_f32 v53, v53, v55
                v_cvt_pk_f16_f32 v54, v52, v53
                v_mul_f32 v52, v52, v52
                v_mul_f32 v53, v53, v53
                v_accvgpr_write_b32 a{A_TAB + k}, v54
                v_cvt_pk_bf16_f32 v52, v52, v53
                ds_write_b32 v50, v52
            """)
        s(f"s_cmp_lg_u32 s{S_DELTA}, 0\ns_cbranch_scc1 L_w1done")
        s("s_mov_b32 s98, 0x05040100\ns_mov_b32 s99, 0x07060302")
        for i in range(3):
            s(f"""
                s_mul_i32 s{S_T0}, s{S_WAVE}, 3
                s_add_u32 s{S_T0}, s{S_T0}, {i}
                s_lshr_b32 s{S_T1}, s{S_T0}, 1
                s_and_b32 s{S_T0}, s{S_T0}, 1
                s_mul_i32 s{S_T2}, s{S_T0}, 36
                s_add_u32 s{S_T2}, s{S_T2}, s{S_T1}
                s_cmp_ge_u32 s{S_T2}, 40
                s_cselect_b32 s{S_T3}, {157440 - 70 * 1024}, 0
                s_lshl_b32 s{S_T2}, s{S_T2}, 10
                v_add_u32 v57, s{S_T2}, v{V_LANE16}
                v_add_u32 v56, s{S_T3}, v57
            """)
            for c6 in range(6):
                d, e = c6 >> 1, c6 & 1
                R = lambda j: 160 + 32 * i + 4 * j + d
                t0 = 62 + 4 * (c6 & 1)
                for t in range(4):
                    s(f"v_perm_b32 v{t0 + t}, v{R(2*t+1)}, v{R(2*t)}, s{98 + e}")
                s(f"ds_write_b128 v{56 if c6 == 5 else 57}, {v(t0, 4)} offset:{6144 * c6}")
        s("L_w1done:")
        s(f"""
            s_waitcnt vmcnt(0) lgkmcnt(0)
            s_barrier
            ds_read_b32 v58, v59
            s_waitcnt lgkmcnt(0)
            v_readfirstlane_b32 s{S_T0}, v58
            s_lshr_b32 s{S_T0}, s{S_T0}, 7
            s_sub_i32 s{S_T0}, s{S_T0}, {127 + 2}
            s_max_i32 s{S_T0}, s{S_T0}, 0
            s_min_i32 s{S_T0}, s{S_T0}, 12
            s_cmp_eq_u32 s{S_T0}, s{S_DELTA}
            s_mov_b32 s{S_DELTA}, s{S_T0}
            s_cbranch_scc0 L_prep
        """)
        self.stamp()

    def dma_ops(self, q, tr, stream="DX"):
        p, cb = divmod(q, 3)
        ops = []
        so = ("0", f"s{S_64}", f"s{S_128}")[cb]
        for k in range(6):
            ops.append(Op(f"s_add_u32 m0, s{S_M0+k}, {STG[cb]}", stream=stream, tr=tr or ()))
            ops.append(Op(f"buffer_load_dwordx4 v{V_DMA+k}, {srd(S_X)}, {so} offen {self.cfg.xpol} lds", stream=stream,
                          tw=[("dma", q)], lat=self.cfg.dma_lat))
        return ops

    def conv_unit(self, q, bar_tok):
        p, cb = divmod(q, 3)
        ops = []
        Y = [V_Y + 48 * t + 16 * cb for t in range(2)]
        for t in range(2):
            ops.append(Op(f"v_mfma_f32_32x32x16_bf16 {v(Y[t],16)}, {a(A_ZERO,4)}, {a(A_ZERO,4)}, 0", stream="MC"))
        for dx in range(3):
            for ir in range(4):
                bb = A_CVB + 8 * (self.cvb % 3); self.cvb += 1
                for h in range(2):
                    ops.append(Op(f"ds_read_b128 {a(bb + 4*h,4)}, v{V_CB + 2*dx + h} offset:{STG[cb] - STG[0] + ir * ROWB}",
                                  stream="DC", tr=[bar_tok], tw=[("rd", q)]))
                if ir < 3:
                    ab = A_CVA + 4 * (self.cva % 3); self.cva += 1
                    ops.append(Op(f"ds_read_b128 {a(ab,4)}, v{V_CA} offset:{(cb * 9 + ir * 3 + dx) * 512}", stream="DC",
                                  tw=[("rd", q)]))
                    cur = ab
                    ops.append(Op(f"v_smfmac_f32_32x32x32_bf16 {v(Y[0],16)}, {a(cur,4)}, {a(bb,8)}, v{V_IDX}", stream="MC"))
                if ir > 0:
                    ops.append(Op(f"v_smfmac_f32_32x32x32_bf16 {v(Y[1],16)}, {a(prev,4)}, {a(bb,8)}, v{V_IDX}", stream="MC"))
                prev = cur
        return ops

    def ln_stats(self, p, cb):
        ops = []
        for t in range(2):
            Y = V_Y + 48 * t + 16 * cb
            S, Q = V_LN + 4 * t, V_LN + 4 * t + 2
            g = []
            for k in range(8):
                y = v(Y + 2 * k, 2)
                if cb == 0 and k == 0:
                    g.append(f"v_pk_mul_f32 {v(Q,2)}, {y}, {y}")
                else:
                    g.append(f"v_pk_fma_f32 {v(Q,2)}, {y}, {y}, {v(Q,2)}")
                if cb == 0 and k == 0: continue
                if cb == 0 and k == 1:
                    g.append(f"v_pk_add_f32 {v(S,2)}, {v(Y,2)}, {y}")
                else:
                    g.append(f"v_pk_add_f32 {v(S,2)}, {v(S,2)}, {y}")
            ops += [Op(x, stream="VL") for x in g]
        return ops

    def ln_finish(self, p):
        L = []
        for t in range(2):
            S, Q = V_LN + 4 * t, V_LN + 4 * t + 2
            L += [f"v_add_f32 v{S}, v{S}, v{S+1}", f"v_add_f32 v{Q}, v{Q}, v{Q+1}"]
        for t in range(2):
            S, Q = V_LN + 4 * t, V_LN + 4 * t + 2
            L += [f"v_permlane32_swap_b32 v{S}, v{Q}"]
        for t in range(2):
            S, Q = V_LN + 4 * t, V_LN + 4 * t + 2
            L += [f"v_add_f32 v{S}, v{S}, v{Q}"]
        for t in range(2):
            S, Q = V_LN + 4 * t, V_LN + 4 * t + 2
            L += [f"v_mov_b32 v{Q}, v{S}"]
        for t in range(2):
            S, Q = V_LN + 4 * t, V_LN + 4 * t + 2
            L += [f"v_permlane32_swap_b32 v{S}, v{Q}"]
        stages = [
            lambda S, Q: f"v_mul_f32 v{S}, {f32(1/96)}, v{S}",
            lambda S, Q: f"v_mul_f32 v{Q}, {f32(1/96)}, v{Q}",
            lambda S, Q: f"v_fma_f32 v{Q}, -v{S}, v{S}, v{Q}",
            lambda S, Q: f"v_max_f32 v{Q}, 0, v{Q}",
            lambda S, Q: f"v_add_f32 v{Q}, {f32(1e-5)}, v{Q}",
            lambda S, Q: f"v_rsq_f32 v{Q}, v{Q}",
            lambda S, Q: f"v_mul_f32 v{Q}, {f32(CS) if S != V_LN else 's%d' % S_SCALE}, v{Q}",
            lambda S, Q: f"v_mul_f32_e64 v{S}, -v{S}, v{Q}",
        ]
        for st in stages:
            for t in range(2):
                L.append(st(V_LN + 4 * t, V_LN + 4 * t + 2))
        ops = [Op(x, stream="VL") for x in L]
        for t in range(2):
            S, Q = V_LN + 4 * t, V_LN + 4 * t + 2
            for k in range(24):
                y = v(V_Y + 48 * t + 2 * k, 2)
                ops.append(Op(f"v_pk_fma_f32 {y}, {y}, {v(Q,2)}, {v(S,2)} op_sel_hi:[1,0,0]", stream="VL"))
        n = 0
        pend = []
        for t in range(2):
            for k in range(24):
                tmp = V_LN + 8 + (n % 8); n += 1
                ops.append(Op(f"v_cvt_pk_bf16_f32 v{tmp}, v{V_Y + 48*t + 2*k}, v{V_Y + 48*t + 2*k + 1}", stream="VL"))
                pend.append(Op(f"v_accvgpr_write_b32 a{A_LN + 48*p + 24*t + k}, v{tmp}", stream="VL"))
                if len(pend) > 2: ops.append(pend.pop(0))
        return ops + pend

    def w_read(self, addr, pool, stream, tr=()):
        buf = A_W + 4 * pool
        b, off = self.frag_base(addr)
        return Op(f"ds_read_b128 {a(buf,4)}, v{b} offset:{off}", stream=stream, tr=tr), buf

    def chain(self, acc, A, B):
        E = V_E
        CV = [f"v_cvt_pk_f16_f32 v{A+i}, v{acc+2*i}, v{acc+2*i+1}" for i in range(8)]
        T = [f"v_pk_fma_f16 v{B+i}, v{A+i}, v{A+i}, s{S_K16}" for i in range(8)]
        Z = [f"v_pk_mul_f16 v{B+i}, v{A+i}, v{B+i}" for i in range(8)]
        hi = "dst_sel:WORD_1 dst_unused:UNUSED_PRESERVE src0_sel:WORD_1"
        def tr(op):
            l = []
            for i in range(10):
                if i < 8: l.append(f"{op} v{E+i}, v{B+i}")
                if i >= 2: l.append(f"{op}_sdwa v{E+i-2}, v{B+i-2} {hi}")
            return l
        D = [f"v_pk_add_f16 v{B+i}, v{E+i}, 1.0 op_sel_hi:[1,0]" for i in range(8)]
        Y = [f"v_pk_mul_f16 v{A+i}, v{A+i}, v{E+i}" for i in range(8)]
        head = []
        for i in range(10):
            if i < 8: head.append(CV[i])
            if 1 <= i < 9: head.append(T[i-1])
            if i >= 2: head.append(Z[i-2])
        return head, tr("v_exp_f16"), D, tr("v_rcp_f16"), Y

    def act_stream(self, N, phase, bufs, g1, g2):
        ops = []
        O = lambda l, st: [Op(x, stream=st) for x in l]
        def AD(k):
            acc = bufs(k)[0]
            ad = [Op(f"v_mad_u32_u16 v{acc+i}, v{acc+i}, 2, s{S_TBASE} op_sel:[1,0,0,0]", stream="VN") for i in range(16)]
            ga = [Op(f"{'ds_read_u16_d16_hi' if (phase == 1 or i & 1) else 'ds_read_u16'} v{acc+i}, v{acc+i}", stream="DG", kind="dsg") for i in range(16)]
            return ad, ga
        ch = {}
        def CH(k):
            if k not in ch:
                b = bufs(k); ch[k] = self.chain(b[1], b[3], b[4])
            return ch[k]
        ops += g1(0, 0) + g1(0, 1)
        ad, ga = AD(0); ops += ad + ga + O(CH(0)[0], "VN") + g1(1, 0)
        if phase == 1: ops += g2(0, 0)
        for k in range(N):
            head, E, D, R, Y = CH(k)
            last = k + 1 == N
            if not last: ops += g1(k + 1, 1)
            ops += O(E, "VT")
            if phase == 2:
                b = bufs(k)
                ops += O([f"v_or_b32 v{b[2]+i}, v{b[0]+2*i}, v{b[0]+2*i+1}" for i in range(8)], "VN") + g2(k, 0)
            D = O(D, "VN")
            if not last:
                ad, ga = AD(k + 1)
                lead = self.cfg.ad_lead if phase == 1 else 0
                ops += ad[:lead]; ad = ad[lead:]
                for i in range(8):
                    ops += ad[len(ad) * i // 8: len(ad) * (i + 1) // 8] + [D[i]]
                ops += ga
            else:
                ops += D
            if k + 2 < N: ops += g1(k + 2, 0)
            ops += O(R, "VT")
            Y = O(Y, "VN")
            if not last:
                h2 = O(CH(k + 1)[0], "VN")
                ops += h2[:8]
                for i in range(8): ops += h2[8 + 2 * i: 10 + 2 * i] + [Y[i]]
            else:
                ops += Y
            ops += g2(k, 1)
            if phase == 1 and not last: ops += g2(k + 1, 0)
        return ops

    def phase1(self):
        c = self.cfg
        self.cvb = self.cva = 0
        ops = []
        bar = lambda name, tr: Op("s_barrier", stream="X", tr=tr, tw=[name])
        adv = lambda: [Op(f"v_add_u32 v{V_DMA+k}, {8 * 98304}, v{V_DMA+k}", stream="VL") for k in range(6)]
        ops.append(Op("s_nop 0", stream="X", tw=[("bar", 0), ("dma", 0), ("dma", 1), ("dma", 2)]))
        def unit(q):
            r = []
            if q > 0:
                r.append(bar(("bar", q), [("rd", q - 1), ("dma", q)]))
                if q + 2 < 12 and q != 3:
                    if (q + 2) % 3 == 0: r += adv()
                    r += self.dma_ops(q + 2, [("bar", q)])
            r += self.conv_unit(q, ("bar", q))
            r += self.ln_stats(q // 3, q % 3)
            if q == 2:
                r.append(bar(("bar", "2b"), [("rd", 2)]))
                r += self.dma_ops(5, [("bar", "2b")])
            if q % 3 == 2: r += self.ln_finish(q // 3)
            return r
        for q in range(3): ops += unit(q)
        def bufs(k): return (V_POOL + 16 * (k % 2), V_POOL + 32, None, V_A + 8 * (k % 2), V_B + 8 * (k % 2))
        self.wn = 0
        frag = {}
        extra = {}
        def g1(k, t):
            p, ch = divmod(k, 12); r = []
            if (k, t) in extra: r += extra[(k, t)]()
            acc = bufs(k)[t]
            for ks in range(6):
                if t == 0:
                    op, frag[ks] = self.w_read(w1_addr(6 * ch + ks), self.wn % 12, "D1"); self.wn += 1
                    r.append(op)
                cc = "0" if ks == 0 else v(acc, 16)
                r.append(Op(f"v_mfma_f32_32x32x16_bf16 {v(acc,16)}, {a(A_LN + 48*p + 24*t + 4*ks,4)}, {a(frag[ks],4)}, {cc}", stream="M1"))
            return r
        def g2(k, t):
            sq = V_SQ + 2 * (k % 12); b = bufs(k)
            if t == 1:
                return [Op(f"v_dot2c_f32_f16 v{sq + (i & 1)}, v{b[3]+i}, v{b[3]+i}", stream="VW") for i in reversed(range(8))]
            return [Op(f"v_pk_add_f32 {v(sq,2)}, {v(sq,2)}, {v(b[0]+2*i,2)}", stream="VW") for i in reversed(range(8))]
        for p in range(3):
            extra[(12 * p + 11, 1)] = (lambda p=p: unit(3 * p + 3) + unit(3 * p + 4) + unit(3 * p + 5))
        def tail():
            r = [bar(("bar", 12), [("rd", 11)])]
            for k in range(18):
                r.append(Op(f"s_add_u32 s{S_T0}, s{S_T1}, {4096 * k}", stream="DX", tr=[("bar", 12)]))
                if k == 5: r.append(Op(f"s_mov_b32 m0, s{S_W2M}", stream="DX"))
                else: r.append(Op(f"s_add_u32 m0, s{S_T0}, {71680 if k < 5 else 100096 - 21 * 1024}", stream="DX"))
                r.append(Op(f"buffer_load_dwordx4 v{V_LANE16}, {srd(S_W2)}, s{S_T0} offen lds", stream="DX", tw=[("w2raw",)], lat=c.dma_lat))
            r.append(Op(f"buffer_load_dword v{V_FLAG}, v{V_CB}, {srd(S_DBG)}, 0 offen sc1", stream="DX", lat=c.dma_lat))
            r.append(Op(f"ds_write_b64 v{V_CB+1}, {a(A_ZERO,2)}", stream="DX", tr=[("bar", 12)], tw=[("w2raw",)]))
            r.append(Op(f"ds_write_b32 v{V_CB+2}, v{V_BB}", stream="DX", tr=[("bar", 12)], tw=[("w2raw",)]))
            r.append(bar(("bar", 13), [("w2raw",)]))
            return r
        def tail_pre():
            L = [f"s_lshl_b32 s{S_T1}, s{S_WAVE}, 10",
                 f"v_mov_b32 v{V_CB}, 0",
                 f"v_min_u32 v{V_CB+1}, 239, v0",
                 f"v_lshlrev_b32 v{V_CB+1}, 3, v{V_CB+1}",
                 f"v_add_u32 v{V_CB+1}, {SUMS}, v{V_CB+1}",
                 f"v_lshrrev_b32 v{V_CB+2}, 2, v{V_LANE16}",
                 f"v_min_u32 v{V_CB+2}, 188, v{V_CB+2}",
                 f"s_mul_i32 s{S_T3}, s{S_WAVE}, 192",
                 f"s_add_u32 s{S_T3}, s{S_T3}, {BVEC}",
                 f"v_add_u32 v{V_CB+2}, s{S_T3}, v{V_CB+2}"]
            return [Op(x, stream="VL") for x in L]
        extra[(37, 0)] = lambda: tail_pre() + tail()
        ops += self.act_stream(48, 1, bufs, g1, g2)
        return self.run(ops, ["M1", "MC"], ["VW", "VL", "VN", "VT"], ["D1", "DG", "DC", "DX"], ["X"], "phase1", c.gap1)

    def run(self, ops, ms, vs, ds, xs, name, gap):
        if self.cfg.nosched:
            self.out += ops
            return
        tr = []
        order, t = schedule(ops, ms, vs, ds, xs, trace=tr, dlimit=self.cfg.dlimit, gap=gap)
        st = {}
        for now, d, s, txt in tr: st[s] = st.get(s, 0) + d
        print(f"; {name}: {len(order)} ops, model {t} cycles, stalls {st}", file=sys.stderr)
        for ab in self.cfg.abl.split(","):
            if ab: order = [o for o in order if o.stream != ab]
        if self.cfg.stamps and self.cfg.fine:
            step = len(order) // self.cfg.fine
            save, self.out = self.out, []
            for i, o in enumerate(order):
                if i and i % step == 0 and i // step < self.cfg.fine: self.stamp()
                self.out.append(o)
            order, self.out = self.out, save
        if self.cfg.trace:
            with open(f"trace_{name}.txt", "w") as f:
                prev = 0
                for o in order:
                    gap = o.t_issue - prev
                    f.write(f"{o.t_issue:6d} {'+%d' % gap if gap > 0 else '':>5s} {o.stream:3s} {o.text}\n")
                    prev = o.t_issue + o.cost
        self.out += order

    def switch(self):
        c = self.cfg
        s = self.seq
        self.stamp()
        s("s_nop 3")
        for ch in range(12): s(f"v_add_f32 v{V_SQ + 2*ch}, v{V_SQ + 2*ch}, v{V_SQ + 2*ch + 1}")
        s("s_nop 1")
        for i in range(6): s(f"v_permlane32_swap_b32 v{V_SQ + 4*i}, v{V_SQ + 4*i + 2}")
        s(f"v_lshrrev_b32 v46, 2, v{V_LANE16}\nv_add_u32 v46, {SUMS}, v46")
        for i in range(6): s(f"v_add_f32 v{V_SQ + 4*i}, v{V_SQ + 4*i}, v{V_SQ + 4*i + 2}")
        for i in range(6): s(f"ds_add_f32 v46, v{V_SQ + 4*i} offset:{256 * i}")
        s(f"""
            v_lshlrev_b32 v47, 2, v0
            v_add_u32 v48, {SUMS}, v47
            s_waitcnt vmcnt(0) lgkmcnt(0)
            s_barrier
            ds_read_b32 v50, v48
            ds_read_b32 v51, v48 offset:1024
            v_readfirstlane_b32 s{S_T0}, v{V_FLAG}
            s_mov_b32 s{S_CNT}, 0
            s_cmp_ge_u32 s{S_T0}, 8
            s_cbranch_scc1 L_flag_ok
            L_flag_poll:
            buffer_load_dword v{V_FLAG}, v{V_CB}, {srd(S_DBG)}, 0 offen sc1
            s_add_u32 s{S_CNT}, s{S_CNT}, 1
            s_waitcnt vmcnt(0)
            v_readfirstlane_b32 s{S_T0}, v{V_FLAG}
            s_cmp_gt_u32 s{S_CNT}, 0x40000
            s_cbranch_scc1 L_flag_ok
            s_cmp_ge_u32 s{S_T0}, 8
            s_cbranch_scc0 L_flag_poll
            L_flag_ok:
            s_lshl_b32 s{S_T0}, s{S_SHARD}, 11
            s_waitcnt lgkmcnt(0)
            buffer_atomic_add_f32 v50, v47, {srd(S_WS)}, s{S_T0} offen
            s_cmp_ge_u32 s{S_WAVE}, 2
            s_cbranch_scc1 L_at_done
            buffer_atomic_add_f32 v51, v47, {srd(S_WS)}, s{S_T0} offen offset:1024
            L_at_done:
        """)
        for k in range(11):
            neg = k >= 6
            i0 = 256 * k - (TP_DW if neg else 0)
            s(f"""
                v_add_u32 v50, {i0}, v0
                v_min_u32 v50, {(TN_DW if neg else TP_DW) - 1}, v50
                v_lshlrev_b32 v50, 2, v50
                v_add_u32 v50, {TN if neg else TP}, v50
                ds_write_b32 v50, a{A_TAB + k}
            """)
        s(f"""
            s_waitcnt vmcnt(0)
            s_barrier
            s_cmp_lg_u32 s{S_WAVE}, 0
            s_cbranch_scc1 L_arrived
            v_lshlrev_b32 v50, 7, v{V_LANE16}
            s_lshl_b32 s{S_T0}, s{S_SHARD}, 8
            s_add_u32 s{S_T0}, s{S_T0}, 0x10000
            v_mov_b32 v51, 1
            s_mov_b64 exec, 0xff
            buffer_atomic_add v51, v50, {srd(S_WS)}, s{S_T0} offen
            s_mov_b64 exec, -1
            L_arrived:
        """)
        s(f"""
            v_lshrrev_b32 v46, 4, v{V_LANE16}
            v_lshrrev_b32 v47, 5, v46
            v_bfe_u32 v48, v46, 2, 2
            v_lshl_add_u32 v48, v47, 2, v48
            v_mul_u32_u24 v48, 6, v48
            v_bfe_u32 v49, v46, 4, 1
            v_lshlrev_b32 v49, 4, v49
            v_and_b32 v50, 1, v46
            v_lshl_add_u32 v49, v50, 3, v49
            v_bfe_u32 v50, v46, 1, 1
            v_lshl_add_u32 v49, v50, 2, v49
            v_lshlrev_b32 v49, 1, v49
            s_mul_i32 s{S_T0}, s{S_WAVE}, 3
            s_cmp_ge_u32 s{S_WAVE}, 2
            s_cselect_b32 s{S_T1}, 186, 0
            s_add_u32 s{S_T0}, s{S_T0}, s{S_T1}
            v_add_u32 v48, s{S_T0}, v48
        """)
        for cl in range(3):
            for ks in range(2):
                for jh in range(2):
                    s(f"""
                        v_add_u32 v50, {cl + 6 * (16 * ks + 8 * jh)}, v48
                        v_cmp_gt_u32 vcc, 112, v50
                        v_mul_u32_u24 v50, 192, v50
                        v_mov_b32 v51, {100096 - 112 * 192}
                        v_mov_b32 v52, 71680
                        v_cndmask_b32 v51, v51, v52, vcc
                        v_add3_u32 v50, v50, v51, v49
                    """)
                    for blk in range(3):
                        f = (cl * 2 + ks) * 3 + blk
                        s(f"ds_read_b64_tr_b16 {v(160 + 4*f + 2*jh, 2)}, v50 offset:{64 * blk}")
        s(f"""
            s_mul_i32 s{S_T0}, s{S_WAVE}, 192
            v_lshlrev_b32 v50, 3, v47
            v_add_u32 v50, s{S_T0}, v50
            v_add_u32 v51, {SUMS}, v50
            v_add_u32 v50, {BVEC}, v50
        """)
        for cl in range(3):
            for ks in range(2):
                for jh in range(2):
                    s(f"ds_read_b64 {v(102 + 4*(cl*2+ks) + 2*jh, 2)}, v50 offset:{2 * (32*cl + 16*ks + 8*jh)}")
        for blk in range(3):
            for g in range(6):
                s(f"v_mfma_f32_32x32x16_bf16 {v(62,16)}, {v(102 + 4*g,4)}, {v(160 + 4*(3*g+blk),4)}, {'0' if g == 0 else v(62,16)}")
            s(f"v_mov_b32 v{56 + blk}, v62")
        s(f"""
            v_and_b32 v52, 31, v46
            v_lshlrev_b32 v52, 2, v52
            v_add_u32 v52, {BIASV}, v52
            s_mov_b32 exec_hi, 0
            ds_add_f32 v52, v56
            ds_add_f32 v52, v57 offset:128
            ds_add_f32 v52, v58 offset:256
            s_mov_b64 exec, -1
        """)
        for r in range(72):
            s(f"""
                v_lshlrev_b32 v{54 + 2*(r&1)}, 16, v{160 + r}
                v_and_b32 v{55 + 2*(r&1)}, 0xffff0000, v{160 + r}
                v_cvt_pk_f16_f32 v{160 + r}, v{54 + 2*(r&1)}, v{55 + 2*(r&1)}
            """)
        s(f"""
            v_and_b32 v53, 31, v46
            v_bfe_u32 v54, v53, 2, 1
            v_lshrrev_b32 v55, 3, v53
            v_cmp_eq_u32 vcc, v54, v47
            v_mov_b32 v54, 7
            v_cndmask_b32 v55, v54, v55, vcc
            v_mov_b32 v56, 0x3f80
        """)
        for g in range(4):
            s(f"""
                v_cmp_eq_u32 vcc, {g}, v55
                v_cndmask_b32 v57, 0, v56, vcc
                v_accvgpr_write_b32 a{A_ID + g}, v57
            """)
        s(f"""
            v_mov_b32 v56, 0x3f803f80
            v_cmp_eq_u32 vcc, 0, v47
            v_cndmask_b32 v57, 0, v56, vcc
            s_waitcnt lgkmcnt(0)
            v_accvgpr_write_b32 a{A_ONES}, v57
            v_accvgpr_write_b32 a{A_ONES+1}, 0
            v_accvgpr_write_b32 a{A_ONES+2}, 0
            v_accvgpr_write_b32 a{A_ONES+3}, 0
            v_mul_u32_u24 v53, 192, v53
            v_lshl_add_u32 v{V_CA}, v47, 5, v53
            v_lshl_add_u32 v{V_CB}, v47, 4, v53
        """)
        s(f"""
            s_cmp_lg_u32 s{S_WAVE}, 0
            s_cbranch_scc1 L_released
            s_lshr_b32 s{S_T0}, s2, 3
            s_and_b32 s{S_T0}, s{S_T0}, 7
            s_lshl_b32 s{S_T0}, s{S_T0}, 11
            s_add_u32 s{S_T0}, s{S_T0}, 0x10000
            v_and_b32 v53, 7, v46
            v_lshlrev_b32 v53, 8, v53
            s_mov_b32 s{S_CNT}, 0
            L_poll:
            buffer_load_dword v54, v53, {srd(S_WS)}, s{S_T0} offen sc1
            s_add_u32 s{S_CNT}, s{S_CNT}, 1
            s_waitcnt vmcnt(0)
            v_cmp_gt_u32 vcc, 32, v54
            s_cmp_gt_u32 s{S_CNT}, 0x40000
            s_cbranch_scc1 L_released
            s_cbranch_vccnz L_poll
            L_released:
            s_waitcnt vmcnt(0) lgkmcnt(0)
            s_barrier
        """)
        self.stamp()
        s(f"""
            v_min_u32 v53, 47, v46
            v_lshlrev_b32 v53, 3, v53
            s_mul_i32 s{S_T0}, s{S_WAVE}, 384
            v_add_u32 v53, s{S_T0}, v53
        """)
        for j in range(8):
            s(f"s_movk_i32 s{S_T1}, {2048 * (j & ~1)}" if not j & 1 else "s_nop 0")
            s(f"buffer_load_dwordx2 {v(62 + 2*j, 2)}, v53, {srd(S_WS)}, s{S_T1} offen offset:{2048 * (j & 1)} sc1")
        for blk in range(3): s(f"ds_read_b32 v{56 + blk}, v52 offset:{128 * blk}")
        for blk in range(3):
            s(f"""
                v_cvt_pk_bf16_f32 v59, v{56 + blk}, v{56 + blk}
                v_lshlrev_b32 v59, 16, v59
                v_sub_f32 v59, v{56 + blk}, v59
                v_cvt_pk_bf16_f32 v59, v{56 + blk}, v59
                v_accvgpr_write_b32 a{A_BIAS + 2*blk}, v59
                v_accvgpr_write_b32 a{A_BIAS + 2*blk + 1}, 0
            """)
        s(f"v_accvgpr_write_b32 a{A_BIAS + 6}, 0\nv_accvgpr_write_b32 a{A_BIAS + 7}, 0")
        for j in range(1, 8): s(f"v_pk_add_f32 v[62:63], v[62:63], {v(62 + 2*j, 2)}")
        s(f"""
            v_mov_b32 v64, {f32(1e-6)}
            v_fmac_f32 v64, {f32(1 / (CS * CS))}, v62
            v_mov_b32 v65, {f32(1e-6)}
            v_fmac_f32 v65, {f32(1 / (CS * CS))}, v63
            v_sqrt_f32 v64, v64
            v_sqrt_f32 v65, v65
            v_cmp_gt_u32 vcc, 48, v46
            v_add_f32 v66, v64, v65
            v_cndmask_b32 v66, 0, v66, vcc
            v_add_f32_dpp v66, v66, v66 row_shr:1 row_mask:0xf bank_mask:0xf bound_ctrl:1
            v_add_f32_dpp v66, v66, v66 row_shr:2 row_mask:0xf bank_mask:0xf bound_ctrl:1
            v_add_f32_dpp v66, v66, v66 row_shr:4 row_mask:0xf bank_mask:0xf bound_ctrl:1
            v_add_f32_dpp v66, v66, v66 row_shr:8 row_mask:0xf bank_mask:0xf bound_ctrl:1
            s_nop 1
            v_readlane_b32 s{S_T0}, v66, 15
            v_readlane_b32 s{S_T1}, v66, 31
            v_readlane_b32 s{S_T2}, v66, 47
            v_mov_b32 v66, s{S_T0}
            v_add_f32 v66, s{S_T1}, v66
            v_add_f32 v66, s{S_T2}, v66
            s_lshl_b32 s{S_T0}, s{S_WAVE}, 2
            s_add_u32 s{S_T0}, s{S_T0}, {MEANP}
            v_mov_b32 v67, s{S_T0}
            v_mov_b32 v68, {MEANP}
            ds_write_b32 v67, v66
            s_waitcnt lgkmcnt(0)
            s_barrier
            ds_read_b128 v[70:73], v68
            v_min_u32 v53, 47, v46
            v_lshlrev_b32 v53, 2, v53
            s_mul_i32 s{S_T0}, s{S_WAVE}, 192
            s_add_u32 s{S_T0}, s{S_T0}, {SUMS}
            v_add_u32 v53, s{S_T0}, v53
            v_add_f32 v70, v70, v71
            v_add_f32 v72, v72, v73
            v_add_f32 v70, v70, v72
            v_mov_b32 v71, {f32(1e-6)}
            v_fmac_f32 v71, {f32(1 / 384)}, v70
            v_rcp_f32 v71, v71
            v_mul_f32 v64, v64, v{V_G}
            v_mul_f32 v65, v65, v{V_G+1}
            v_fma_f32 v64, v64, v71, 1.0
            v_fma_f32 v65, v65, v71, 1.0
            v_mul_f32 v64, {f32(1 / CS)}, v64
            v_mul_f32 v65, {f32(1 / CS)}, v65
            v_cvt_pk_f16_f32 v64, v64, v65
            ds_write_b32 v53, v64
            s_waitcnt lgkmcnt(0)
        """)
        for cl in range(3):
            for ks in range(2):
                for jh in range(2):
                    s(f"ds_read_b64 {v(102 + 4*(cl*2+ks) + 2*jh, 2)}, v51 offset:{2 * (32*cl + 16*ks + 8*jh)}")
        s(f"s_mul_i32 s{S_T0}, s{S_WAVE}, 18")
        for f in range(18):
            for t in range(4):
                s(f"v_pk_mul_f16 v{160 + 4*f + t}, v{160 + 4*f + t}, v{102 + 4*(f//3) + t}")
            s(f"""
                s_add_u32 s{S_T1}, s{S_T0}, {f}
                s_cmp_ge_u32 s{S_T1}, 21
                s_cselect_b32 s{S_T2}, {100096 - 21 * 1024 - 71680}, 0
                s_add_u32 s{S_T1}, s{S_T1}, 70
                s_lshl_b32 s{S_T1}, s{S_T1}, 10
                s_add_u32 s{S_T1}, s{S_T1}, s{S_T2}
                v_add_u32 v{54 + (f & 1)}, s{S_T1}, v{V_LANE16}
                ds_write_b128 v{54 + (f & 1)}, {v(160 + 4*f, 4)}
            """)
        s("s_waitcnt lgkmcnt(0)\ns_barrier")
        self.stamp()

    def phase2(self):
        c = self.cfg
        YL = [8, 16]; YC = [24, 32, 56 - 0][:2]
        XB = [40, 48]
        def bufs(k): return (86 + 16 * (k % 2), 118 + 16 * (k % 2), YL[k % 2], YC[k % 2], V_B + 8 * (k % 2))
        f1, f2 = {}, {}
        cnt = dict(w1=0, w2=0)
        def g1(k, t):
            p, ch = divmod(k, 12); r = []
            acc = bufs(k)[t]
            for ks in range(6):
                if t == 0:
                    op, f1[ks] = self.w_read(w1_addr(6 * ch + ks), cnt["w1"] % 6, "D1"); cnt["w1"] += 1
                    r.append(op)
                cc = "0" if ks == 0 else v(acc, 16)
                r.append(Op(f"v_mfma_f32_32x32x16_bf16 {v(acc,16)}, {a(f1[ks],4)}, {a(A_LN + 48*p + 24*t + 4*ks,4)}, {cc}", stream="M1"))
            return r
        def xload(n):
            p, k = divmod(n, 6); blk, t = divmod(k, 2)
            return [Op(f"buffer_load_dwordx4 {v(XB[n % 2] + 4*q,4)}, v{V_CA}, {srd(S_X)}, s{S_ROW + 2*p + t} offen offset:{64*blk + 16*q} {c.xpol2}",
                       stream="DX", lat=c.x_lat) for q in range(2)]
        def g2(k, t):
            p, ch = divmod(k, 12); r = []
            y = bufs(k)[2 + t]
            base = V_Y + 48 * t
            if ch == 0:
                for blk in range(3):
                    r.append(Op(f"v_mfma_f32_32x32x16_bf16 {v(base + 16*blk,16)}, {a(A_BIAS + 2*blk,4)}, {a(A_ONES,4)}, 0", stream="M2"))
            for ks in range(2):
                for blk in range(3):
                    if t == 0:
                        op, f2[(ks, blk)] = self.w_read(w2_addr((ch * 2 + ks) * 3 + blk), 6 + cnt["w2"] % 6, "D2"); cnt["w2"] += 1
                        r.append(op)
                    acc = v(base + 16 * blk, 16)
                    r.append(Op(f"v_mfma_f32_32x32x16_f16 {acc}, {a(f2[(ks, blk)],4)}, {v(y + 4*ks,4)}, {acc}", stream="M2"))
            if ch % 4 == 1 + t:
                n = 6 * p + 2 * (ch // 4) + t
                r.append(Op(f"v_smfmac_f32_32x32x32_bf16 {v(base + 16*(ch//4),16)}, {a(A_ID,4)}, {v(XB[n % 2],8)}, v{V_IDX}", stream="M2"))
                if n + 2 < 24: r += xload(n + 2)
            if ch == 11:
                for j in range(24):
                    r.append(Op(f"v_cvt_pk_bf16_f32 v{base + j}, v{base + 2*j}, v{base + 2*j + 1}", stream="VE"))
                    if j % 4 == 3:
                        r.append(Op(f"buffer_store_dwordx4 {v(base + j - 3,4)}, v{V_CB}, {srd(S_OUT)}, s{S_ROW + 2*p + t} offen offset:{8 * (j - 3)} {c.opol}", stream="DS"))
            return r
        ops = xload(0) + xload(1)
        ops += self.act_stream(48, 2, bufs, g1, g2)
        self.run(ops, ["M1", "M2"], ["VE", "VN", "VT"], ["D1", "D2", "DG", "DS", "DX"], [], "phase2", c.gap2)

    def dump_ln(self):
        s = self.seq
        s(f"""
            s_lshl_b32 s{S_T0}, s2, 2
            s_add_u32 s{S_T0}, s{S_T0}, s{S_WAVE}
            s_mul_i32 s{S_T0}, s{S_T0}, {192 * 256}
            s_add_u32 s{S_T0}, s{S_T0}, 0x100000
            v_lshrrev_b32 v46, 2, v{V_LANE16}
        """)
        for r in range(192):
            s(f"buffer_store_dword a{r}, v46, {srd(S_WS)}, s{S_T0} offen offset:{(r % 16) * 256}")
            if r % 16 == 15: s(f"s_add_u32 s{S_T0}, s{S_T0}, 4096\ns_waitcnt vmcnt(0)")

    def dump_stamps(self):
        s = self.seq
        s(f"""
            s_lshl_b32 s{S_T0}, s2, 2
            s_add_u32 s{S_T0}, s{S_T0}, s{S_WAVE}
            s_lshl_b32 s{S_T0}, s{S_T0}, 8
            s_add_u32 s{S_T0}, s{S_T0}, 0x20000
            v_lshrrev_b32 v46, 2, v{V_LANE16}
            buffer_store_dword v{self.cfg.stamp_reg}, v46, {srd(S_WS)}, s{S_T0} offen
        """)

    def build(self):
        c = self.cfg
        self.prologue()
        self.phase1()
        if c.dump: self.dump_ln()
        self.switch()
        self.phase2()
        if c.stamps:
            self.stamp()
            self.seq("s_waitcnt vmcnt(0)")
            self.stamp()
            self.dump_stamps()
        self.seq("L_last:\ns_endpgm")
        seq, t = finalize(self.out, cover=c.cover)
        if c.nowait:
            i0 = min(i for i, o in enumerate(seq) if o.stream == "M2")
            i1 = max(i for i, o in enumerate(seq) if o.stream == "M2")
            seq = [o for i, o in enumerate(seq) if not (i0 < i < i1 and o.kind == "wait")]
        if c.loop2:
            idx = [i for i, o in enumerate(seq) if o.mn == "v_mfma_f32_32x32x16_bf16" and o.stream == "M1"]
            idx = idx[len(idx) // 2:]
            i1, i2 = idx[144], idx[288]
            end = max(i for i, o in enumerate(seq) if o.stream in ("DS", "VE", "M2")) + 1
            save, self.out = self.out, []
            self.nstamp -= 2
            tail = seq[end:]
            self.stamp(); pre = self.out; self.out = []
            self.stamp(); self.seq("s_waitcnt vmcnt(0)"); self.stamp(); self.dump_stamps(); self.seq("L_last:\ns_endpgm")
            seq = seq[:i1] + pre + [Op(f"s_mov_b32 s{S_CNT}, 4"), Op("L_loop2:")] + seq[i1:i2] + [Op(f"s_sub_u32 s{S_CNT}, s{S_CNT}, 1"), Op(f"s_cmp_lg_u32 s{S_CNT}, 0"), Op("s_cbranch_scc1 L_loop2"), Op("s_nop 15")] + self.out
            print("; loop body", i2 - i1, "instrs", sum(o.nbytes for o in seq[i1:i2]), "bytes", file=sys.stderr)
        nb = sum(o.nbytes for o in seq)
        print(f"; total {len(seq)} instrs, {nb} bytes, model {t} cycles, waits {sum(o.kind == 'wait' for o in seq)}, nops {sum(o.cost // 4 for o in seq if o.kind == 'nop')}", file=sys.stderr)
        return seq, nb


HEADER = open("standalone__modern_conv_block_slak__vision.s.ref").read().split("; Override launch")[0]


def main():
    ap = argparse.ArgumentParser()
    ap.add_argument("-o", default="standalone__modern_conv_block_slak__vision.s")
    ap.add_argument("--lut1", default="LCLCLCLCLCLL")
    ap.add_argument("--nosched", action="store_true")
    ap.add_argument("--trace", action="store_true")
    ap.add_argument("--abl", default="")
    ap.add_argument("--fine", type=int, default=0)
    ap.add_argument("--loop2", action="store_true")
    ap.add_argument("--nowait", action="store_true")
    ap.add_argument("--ldslat", type=int, default=110)
    ap.add_argument("--mlat", type=int, default=56)
    ap.add_argument("--cover", type=int, default=160)
    ap.add_argument("--preread", default="")
    ap.add_argument("--dump", action="store_true")
    ap.add_argument("--stamps", action="store_true")
    ap.add_argument("--noprefetch", dest="prefetch", action="store_false")
    ap.add_argument("--xpol", default="")
    ap.add_argument("--xpol2", default="")
    ap.add_argument("--opol", default="")
    ap.add_argument("--gap1", type=int, default=32)
    ap.add_argument("--gap2", type=int, default=32)
    ap.add_argument("--ad_lead", type=int, default=6)
    ap.add_argument("--dlimit", type=int, default=2)
    ap.add_argument("--dma_lat", type=int, default=3500)
    ap.add_argument("--x_lat", type=int, default=2500)
    cfg = ap.parse_args()
    cfg.ws_bytes = 0x4000000 if cfg.dump else (0x80000 if cfg.stamps else 0x20000)
    cfg.stamp_reg = 150
    import asmlib
    asmlib.Machine.LDS_LAT = cfg.ldslat; asmlib.Machine.MLAT = cfg.mlat
    g = Gen(cfg)
    seq, nb = g.build()
    body = "\n".join(o.text for o in seq).replace("CODE_BYTES", str(nb - 0))
    txt = HEADER + f"""; @launch grid=(256,1,1) block=(256,1,1) lds={LDS_TOTAL}
.amdgcn_target "amdgcn-amd-amdhsa--gfx950"
.text
.globl {NAME}
.p2align 8
.type {NAME},@function
{NAME}:
{body}
.section .rodata,"a"
.p2align 6
.amdhsa_kernel {NAME}
  .amdhsa_next_free_vgpr 512
  .amdhsa_next_free_sgpr 102
  .amdhsa_accum_offset 256
  .amdhsa_group_segment_fixed_size 0
  .amdhsa_kernarg_size 72
  .amdhsa_user_sgpr_count 2
  .amdhsa_user_sgpr_kernarg_segment_ptr 1
  .amdhsa_system_sgpr_workgroup_id_x 1
  .amdhsa_float_denorm_mode_32 3
.end_amdhsa_kernel
"""
    open(cfg.o, "w").write(txt)


if __name__ == "__main__":
    main()
```

```python
import re

REG_RE = re.compile(r"^(-|\|)?\|?([vas])(\d+)\|?$")
RNG_RE = re.compile(r"^(-|\|)?\|?([vas])\[(\d+):(\d+)\]\|?$")


def regs_of(tok):
    tok = tok.strip()
    if tok.startswith("abs(") or tok.startswith("-abs("):
        tok = tok[tok.index("(") + 1:-1]
    m = REG_RE.match(tok)
    if m:
        return [(m.group(2), int(m.group(3)))]
    m = RNG_RE.match(tok)
    if m:
        return [(m.group(2), i) for i in range(int(m.group(3)), int(m.group(4)) + 1)]
    if tok == "vcc":
        return [("s", "vcc")]
    if tok == "m0":
        return [("s", "m0")]
    if tok == "exec":
        return [("s", "exec")]
    return []


TRANS = ("v_exp_", "v_rcp_", "v_rsq_", "v_sqrt_", "v_log_")
WINDOW = ("v_pk_add_f32", "v_pk_mul_f32", "v_pk_fma_f32", "v_dot2")
RMW = ("v_fmac_", "v_dot2c_", "v_pk_fmac")
VOP12 = ("v_mov_b32", "v_add_f32", "v_sub_f32", "v_subrev_f32", "v_mul_f32", "v_fmac_f32", "v_max_f32", "v_min_f32",
         "v_and_b32", "v_or_b32", "v_xor_b32", "v_lshlrev_b32", "v_lshrrev_b32", "v_ashrrev_i32", "v_add_u32",
         "v_sub_u32", "v_subrev_u32", "v_exp_f32", "v_rcp_f32", "v_rsq_f32", "v_sqrt_f32", "v_exp_f16", "v_rcp_f16",
         "v_dot2c_f32_f16", "v_dot2c_f32_bf16", "v_permlane32_swap_b32", "v_mul_u32_u24", "v_readfirstlane_b32",
         "v_cndmask_b32", "v_min_u32", "v_max_u32", "v_cvt_f32_u32", "v_cvt_f32_f16", "v_cvt_f16_f32", "v_log_f32")
INLINE = {"0", "0.5", "-0.5", "1.0", "-1.0", "2.0", "-2.0", "4.0", "-4.0"} | {str(i) for i in range(-16, 65)} | {
    "0x3f000000", "0x3f800000", "0x40000000", "0x40800000", "0xbf000000", "0xbf800000", "0xc0000000", "0xc0800000"}


class Op:
    __slots__ = ("text", "mn", "kind", "defs", "uses", "nbytes", "tw", "tr", "stream", "srcc", "ab", "sdwa_dst",
                 "trans", "cost", "idx", "preds", "t_issue", "note", "lat", "wide_store", "dpp", "earliest", "group")

    def __init__(self, text, tw=(), tr=(), stream=None, kind=None, lat=None):
        self.text = text.strip()
        self.tw = set(tw)
        self.tr = set(tr)
        self.stream = stream
        self.srcc = []
        self.ab = []
        self.sdwa_dst = False
        self.trans = False
        self.wide_store = False
        self.dpp = False
        self.note = None
        self.group = ()
        self.lat = lat
        self.earliest = 0
        self.preds = []
        self.t_issue = None
        t = self.text
        if t.endswith(":"):
            self.mn = "label"; self.kind = "label"; self.defs = []; self.uses = []; self.nbytes = 0; self.cost = 0
            return
        parts = t.split(None, 1)
        mn = self.mn = parts[0]
        rest = parts[1] if len(parts) > 1 else ""
        ops = []
        depth = 0; cur = ""
        for ch in rest:
            if ch in "[(": depth += 1
            if ch in "])": depth -= 1
            if ch == "," and depth == 0:
                ops.append(cur.strip()); cur = ""
            else:
                cur += ch
        mods = ""
        cur = cur.strip()
        if cur:
            sp = cur.split(None, 1)
            ops.append(sp[0])
            mods = sp[1] if len(sp) > 1 else ""
        R = [regs_of(o) for o in ops]
        flat = lambda l: [r for x in l for r in x]
        defs, uses = [], []
        nbytes, cost = 8, 4
        if mn.startswith("v_mfma"):
            k = "m"; defs = R[0]; uses = flat(R[1:]); self.srcc = R[3]; self.ab = R[1] + R[2]; cost = 8
        elif mn.startswith("v_smfmac"):
            k = "m"; defs = R[0]; uses = flat(R); self.srcc = R[0]; self.ab = R[1] + R[2] + R[3]; cost = 12
        elif mn.startswith("v_"):
            k = "v"
            base = mn.replace("_e32", "").replace("_e64", "").replace("_sdwa", "").replace("_dpp", "")
            defs = R[0]; uses = flat(R[1:])
            if base.startswith(RMW) or "UNUSED_PRESERVE" in mods:
                uses = uses + R[0]
            if base.startswith("v_permlane"):
                defs = R[0] + R[1]; uses = R[0] + R[1]; cost = 8
            if base.startswith(("v_add_co", "v_sub_co", "v_addc_co")):
                defs = R[0] + R[1]; uses = flat(R[2:])
            if "dst_sel:WORD" in mods or "dst_sel:BYTE" in mods:
                self.sdwa_dst = True
            if base.startswith(TRANS):
                self.trans = True; cost = 8
            if base.startswith(WINDOW):
                k = "pk"
            if "_dpp" in mn or "row_" in mods or "quad_perm" in mods or "wave_" in mods:
                self.dpp = True
                if base.startswith(("v_mov",)) and "bound_ctrl" not in mods:
                    uses = uses + R[0]
            lit = any((not regs_of(o)) and o not in INLINE and not o.startswith("vcc") for o in ops[1:])
            plain = base in VOP12 and not mods and "_sdwa" not in mn and "_e64" not in mn and "_dpp" not in mn
            if plain and any(o.startswith(("-v", "|", "abs", "-abs", "-s")) for o in ops[1:]):
                plain = False
            if plain and len(ops) >= 3 and not base.startswith(("v_readfirst", "v_permlane")) and not (R[2] and R[2][0][0] == "v"):
                plain = False
            if plain and base == "v_cndmask_b32" and ops[3] != "vcc":
                plain = False
            if base.startswith("v_cmp"):
                plain = ops[0] == "vcc" and not mods and R[2] and R[2][0][0] == "v"
            nbytes = (8 if lit else 4) if plain else 8
        elif mn.startswith("ds_"):
            if mn.startswith(("ds_read", "ds_bpermute", "ds_swizzle")) or "_rtn" in mn:
                k = "dsr"; defs = R[0]; uses = flat(R[1:])
            else:
                k = "dsw"; uses = flat(R); cost = 20 if "b128" in mn else (8 if "b64" in mn else 4)
        elif mn.startswith(("buffer_load", "global_load")):
            if " lds" in (" " + mods) or "_lds_" in mn:
                k = "dma"; uses = flat(R) + [("s", "m0")]; cost = 12
            else:
                k = "vld"; defs = R[0]; uses = flat(R[1:]); cost = 12
        elif mn.startswith(("buffer_store", "global_store")):
            k = "vst"; uses = flat(R); cost = 24
            self.wide_store = "x3" in mn or "x4" in mn
            self.ab = R[0] if mn.startswith("buffer") else R[1]
        elif mn.startswith(("buffer_atomic", "global_atomic")):
            k = "vst"; uses = flat(R); cost = 12
            if "sc0" in mods:
                k = "vld"; defs = R[0]
        elif mn.startswith(("buffer_wbl2", "buffer_inv")):
            k = "vst"; cost = 12
        elif mn == "s_barrier":
            k = "bar"; nbytes = 4
        elif mn == "s_waitcnt":
            k = "wait"; nbytes = 4
        elif mn == "s_nop":
            k = "nop"; nbytes = 4; cost = 4 * (int(ops[0]) + 1)
        elif mn.startswith(("s_cbranch", "s_branch", "s_endpgm", "s_setpc", "s_call")):
            k = "br"; nbytes = 4; uses = flat(R)
            if "vcc" in mn: uses = uses + [("s", "vcc")]
            if "scc" in mn: uses = uses + [("s", "scc")]
        elif mn.startswith(("s_load", "s_memtime", "s_memrealtime")):
            k = "smem"; defs = R[0]; uses = flat(R[1:])
        elif mn.startswith("s_"):
            k = "s"
            if mn.startswith(("s_cmp", "s_setprio", "s_sleep", "s_bitcmp")):
                uses = flat(R)
            else:
                defs = R[0]; uses = flat(R[1:])
                if "saveexec" in mn:
                    defs = defs + [("s", "exec")]; uses = uses + [("s", "exec")]
            if mn.startswith(("s_cselect", "s_addc", "s_subb")): uses = uses + [("s", "scc")]
            if not mn.startswith(("s_mov", "s_mul", "s_cselect", "s_setprio", "s_sleep", "s_getpc", "s_getreg")):
                defs = defs + [("s", "scc")]
            lit = any((not regs_of(o)) and o not in INLINE for o in ops[1:])
            nbytes = 8 if (lit and not mn.startswith(("s_movk", "s_setprio", "s_sleep", "s_getreg"))) else 4
        else:
            raise ValueError("unknown instruction: " + t)
        self.kind = kind or k
        self.defs = defs
        self.uses = uses
        self.nbytes = nbytes
        self.cost = cost

    def __repr__(self):
        return self.text


IS_VALU = ("v", "pk")
IS_LDS = ("dsr", "dsw", "dsg")
IS_VM = ("vld", "vst", "dma")


class Machine:
    LDS_LAT = 110
    MLAT = 56
    SVC = {"dsr": 16, "dsg": 27, "dsw": 32}

    def __init__(self):
        self.t = 0
        self.last_m = -1000
        self.valu_end = -1000
        self.lds_free = 0
        self.addr = 0
        self.chunk = 0
        self.chunk_t = 0
        self.fetch_stall = 0

    def fetch_time(self, nbytes):
        return self.chunk_t + 20 if (self.addr + nbytes - 1) >> 5 > self.chunk else 0

    def fits(self, op):
        if self.fetch_time(op.nbytes) > self.t: return False
        end = self.addr + op.nbytes
        new = (end - 1) >> 5 > self.chunk
        need = (self.t if new else self.chunk_t) + 20 - (self.t + op.cost)
        rem = -end % 32
        return need <= (rem // 8) * 8 + (rem % 8)

    def start_time(self, op):
        t = self.t
        f = self.fetch_time(op.nbytes)
        if f > t: t += (f - t + 3) // 4 * 4
        k = op.kind
        if k == "m":
            t = max(t, self.last_m + 32)
        elif k == "pk":
            t = max(t, self.last_m + 44)
        elif k in IS_LDS or k in IS_VM:
            t = max(t, self.valu_end + 8)
        return t

    def issue(self, op, t=None):
        t0 = self.start_time(op) if t is None else max(t, self.start_time(op))
        f = self.fetch_time(op.nbytes)
        if f > self.t: self.fetch_stall += (f - self.t + 3) // 4 * 4
        op.t_issue = t0
        self.t = t0 + op.cost
        self.addr += op.nbytes
        if (self.addr - 1) >> 5 > self.chunk:
            self.chunk = (self.addr - 1) >> 5
            self.chunk_t = t0
        k = op.kind
        done = self.t
        if k == "m":
            self.last_m = t0
            done = t0 + self.MLAT
        elif k in IS_VALU:
            self.valu_end = self.t
        elif k in IS_LDS:
            s = max(self.lds_free, t0) + self.SVC[k]
            self.lds_free = s
            done = s + self.LDS_LAT
        elif k in IS_VM:
            done = t0 + (op.lat or 2500)
        return done


def build_deps(ops):
    last_w = {}
    readers = {}
    tokw = {}
    for i, op in enumerate(ops):
        op.idx = i
        assert ("s", "scc") not in op.uses
        op.defs = [r for r in op.defs if r != ("s", "scc")]
        p = {}
        for r in op.uses:
            if r in last_w:
                p[last_w[r]] = "raw"
        for r in op.defs:
            if r in last_w:
                p.setdefault(last_w[r], "waw")
            for j in readers.get(r, ()):
                if j != i:
                    p.setdefault(j, "war")
        for tk in op.tr:
            assert tk in tokw, ("token never written", tk, op.text)
            for j in tokw[tk]:
                p[j] = "raw"
        op.preds = [(ops[j], ty) for j, ty in p.items()]
        for r in op.uses:
            readers.setdefault(r, []).append(i)
        for r in op.defs:
            last_w[r] = i
            readers[r] = []
        for tk in op.tw:
            tokw.setdefault(tk, []).append(i)


def wait_states_between(seq, i, j):
    n = 0
    for k in range(i + 1, j):
        o = seq[k]
        if o.kind == "label":
            continue
        n += o.cost // 4 if o.kind == "nop" else 1
    return n


def required_states(p, c):
    need = 0
    pd, cu, cd = set(p.defs), set(c.uses), set(c.defs)
    pv = p.kind in IS_VALU
    cv = c.kind in IS_VALU
    if p.kind == "m":
        if c.kind == "m":
            if pd & set(c.ab): need = max(need, 12)
            if pd & set(c.srcc) and list(p.defs) != list(c.srcc): need = max(need, 10)
            if pd & cd and not (pd & set(c.srcc)) and list(p.defs) != list(c.defs): need = max(need, 10)
        elif (pd & (cu | cd)): need = max(need, 12)
        if cv and set(p.srcc) & cd: need = max(need, 7)
    if pv:
        vd = {r for r in pd if r[0] in "va"}
        sd = {r for r in pd if r[0] == "s"}
        if c.kind == "m" and vd & cu: need = max(need, 2)
        if cv:
            if p.trans and vd & cu: need = max(need, 1)
            if p.sdwa_dst and vd & (cu | cd): need = max(need, 1)
            if c.mn.startswith("v_permlane") and vd & cu: need = max(need, 2)
            if c.dpp and vd & cu: need = max(need, 2)
            if c.mn.startswith(("v_readfirstlane", "v_readlane")) and vd & cu: need = max(need, 1)
            if sd & cu: need = max(need, 4 if c.mn.startswith(("v_readlane", "v_writelane")) else 2)
            if p.mn.startswith("v_dot") and vd & (cu | cd):
                same = p.mn == c.mn and not (vd & (cu - cd))
                if not same: need = max(need, 3)
        if p.mn.startswith("v_dot") and not cv and vd & (cu | cd): need = max(need, 3)
        if c.kind in IS_VM and sd & cu: need = max(need, 5)
        if c.kind in ("s", "br", "smem") and sd & cu: need = max(need, 2)
        if ("s", "exec") in pd: need = max(need, 5)
    if p.wide_store and set(p.ab) & cd: need = max(need, 2)
    if p.kind == "dsw" and set(p.uses) & cd: need = max(need, 2)
    if p.kind == "s" and ("s", "m0") in pd and c.kind == "dma": need = max(need, 1)
    return need


class Emitter:
    def __init__(self, cover=0):
        self.out = []
        self.mach = Machine()
        self.ldsq = []
        self.vmq = []
        self.smem = []
        self.seen = set()
        self.saved = {}
        self.maybe = set()
        self.cover = cover
        self.cover_vm = 1 << 30

    def _put(self, op, t=None):
        done = self.mach.issue(op, t)
        self.out.append(op)
        return done

    def states_needed(self, op):
        need = dist = 0
        out = self.out
        for k in range(len(out) - 1, max(-1, len(out) - 20), -1):
            p = out[k]
            if p.kind == "label": continue
            r = required_states(p, op)
            if r - dist > need: need = r - dist
            dist += p.cost // 4 if p.kind == "nop" else 1
            if dist >= 13: break
        return need

    def needs_wait(self, op):
        touched = set(op.uses) | set(op.defs)
        need_l = need_v = -1
        for k, (q, _) in enumerate(self.ldsq):
            if not touched.isdisjoint(q.defs) or (q.tw & op.tr): need_l = k
        for k, (q, _) in enumerate(self.vmq):
            if not touched.isdisjoint(q.defs) or (q.tw & op.tr): need_v = k
        return need_l, need_v, any(not touched.isdisjoint(q.defs) for q in self.smem)

    def emit(self, op, t=None):
        mach = self.mach
        if op.kind == "label":
            name = op.text[:-1]
            self.seen.add(name)
            for sl, sv, ss in self.saved.pop(name, []):
                def join(old, cur):
                    ids = {id(q) for q, _ in old}
                    inner = [e for e in cur if id(e[0]) not in ids]
                    for q, _ in inner: self.maybe.add(id(q))
                    return list(old) + inner
                self.ldsq = join(sl, self.ldsq); self.vmq = join(sv, self.vmq); self.smem = list(set(ss) | set(self.smem))
            self.out.append(op)
            return 0
        if op.kind == "br" and op.mn.startswith(("s_cbranch", "s_branch")):
            tgt = op.text.split()[-1]
            if tgt not in self.seen and tgt != "L_back":
                self.saved.setdefault(tgt, []).append((list(self.ldsq), list(self.vmq), list(self.smem)))
        if op.kind == "wait":
            tt = 0
            m = re.search(r"lgkmcnt\((\d+)\)", op.text)
            if m:
                assert int(m.group(1)) == 0
                if self.ldsq: tt = self.ldsq[-1][1]
                self.ldsq = []; self.smem = []
            m = re.search(r"vmcnt\((\d+)\)", op.text)
            if m:
                n = int(m.group(1))
                assert n == 0 or not any(id(q) in self.maybe for q, _ in self.vmq[-n:])
                gone = self.vmq[:len(self.vmq) - n]
                if gone: tt = max(tt, max(d for _, d in gone))
                self.vmq = self.vmq[len(gone):]
            self._put(op)
            mach.t = max(mach.t, tt)
            return mach.t
        need_l, need_v, need_s = self.needs_wait(op)
        if need_l >= 0 or need_v >= 0 or need_s:
            txt = "s_waitcnt"
            tt = 0
            now = max(mach.t, t or 0)
            ldsq, vmq = self.ldsq, self.vmq
            if need_v >= 0:
                k = need_v
                while k + 1 < len(vmq) and vmq[k + 1][1] + self.cover_vm <= now: k += 1
                k = max(k, len(vmq) - 64)
                n = sum(1 for q, _ in vmq[k + 1:] if id(q) not in self.maybe)
                txt += f" vmcnt({n})"
                tt = max(tt, vmq[need_v][1])
                self.vmq = vmq[k + 1:]
            if need_s:
                txt += " lgkmcnt(0)"
                if ldsq: tt = max(tt, ldsq[-1][1])
                self.ldsq = []; self.smem = []
            elif need_l >= 0:
                assert not self.smem
                k = need_l
                while k + 1 < len(ldsq) and ldsq[k + 1][1] + self.cover <= max(now, ldsq[need_l][1]): k += 1
                k = max(k, len(ldsq) - 16)
                n = sum(1 for q, _ in ldsq[k + 1:] if id(q) not in self.maybe)
                txt += f" lgkmcnt({n})"
                tt = max(tt, ldsq[need_l][1])
                self.ldsq = ldsq[k + 1:]
            self._put(Op(txt))
            mach.t = max(mach.t, tt)
        need = self.states_needed(op)
        if need > 0:
            self._put(Op(f"s_nop {need - 1}"))
        done = self._put(op, t)
        if op.kind in IS_LDS: self.ldsq.append((op, done))
        elif op.kind in IS_VM: self.vmq.append((op, done))
        elif op.kind == "smem": self.smem.append(op)
        for g in op.group: done = self.emit(g)
        return done


def schedule(em, ops, m_streams, v_streams, d_streams, x_streams=(), max_lds=12, trace=None, dlimit=2, gap=32, hook=None, drop=()):
    build_deps(ops)
    S = {}
    for op in ops:
        S.setdefault(op.stream, []).append(op)
    for s in S:
        assert s in m_streams or s in v_streams or s in d_streams or s in x_streams, s
    pos = {s: 0 for s in S}
    done = {}
    order = []
    mach = em.mach
    lds_done = []
    rr = 0

    def head(s):
        return S[s][pos[s]] if s in S and pos[s] < len(S[s]) else None

    def ready(op):
        t = op.earliest
        for p, ty in op.preds:
            if p.idx not in done:
                return None
            if ty == "raw" or (ty == "waw" and p.kind != "v" and p.kind != "pk"):
                if p.kind == "m" and op.kind == "m" and list(p.defs) == list(op.srcc) and not (set(p.defs) & set(op.ab)):
                    continue
                if p.kind == "m" and op.kind == "m" and ty == "waw" and list(p.defs) == list(op.defs):
                    continue
                t = max(t, done[p.idx])
        return t

    def states_ok(op):
        return em.states_needed(op) == 0

    def put(op, t=None):
        if hook: hook(len(order))
        d = em.emit(op, t) if op.stream not in drop else mach.t
        done[op.idx] = d
        order.append(op)
        pos[op.stream] += 1
        if op.kind in IS_LDS:
            lds_done.append(d)

    def lds_out(now):
        n = 0
        for d in reversed(lds_done):
            if d > now: n += 1
            else: break
        return n

    def try_d(limit, strict=True):
        n = 0
        progress = True
        while n < limit and progress:
            progress = False
            for s in d_streams:
                op = head(s)
                if op is None: continue
                r = ready(op)
                if r is None or r > mach.t + 4 or not states_ok(op): continue
                if op.kind in IS_LDS and (lds_out(mach.t) >= max_lds or mach.lds_free > mach.t + 200): continue
                if n >= 1 and n >= limit - 1 and strict and not mach.fits(op): continue
                put(op)
                if op.kind != "s": n += 1
                progress = True
                break
        return n

    def window_soon(horizon):
        for s in v_streams:
            if s not in S: continue
            t = 0
            k = pos[s]
            while k < len(S[s]) and t < horizon:
                o = S[s][k]
                if o.kind == "pk":
                    return True
                t += o.cost
                k += 1
        return False

    total = len(ops)
    while len(order) < total:
        now = mach.t
        did = False
        for s in x_streams:
            op = head(s)
            if op is None: continue
            r = ready(op)
            if r is not None and r <= now and states_ok(op):
                put(op); did = True
                break
        if did: continue
        vc = []
        for s in v_streams:
            op = head(s)
            if op is None: continue
            r = ready(op)
            if r is None: continue
            vc.append((s, op, r, states_ok(op)))
        pk_ready = [c for c in vc if c[1].kind == "pk" and c[2] <= now + 4 and c[3]]
        in_window = pk_ready and mach.last_m + 44 <= now
        if mach.last_m + gap <= now + 2 and not in_window:
            ms = list(m_streams[rr:]) + list(m_streams[:rr])
            for s in ms:
                op = head(s)
                if op is None: continue
                r = ready(op)
                if r is None or r > now + 4 or not states_ok(op): continue
                if pk_ready and op.note != "urgent": continue
                put(op)
                rr = (m_streams.index(s) + 1) % len(m_streams)
                try_d(dlimit)
                did = True
                break
        if did: continue
        best = None
        for s, op, r, ok in vc:
            if not ok or r > now + 4: continue
            if op.kind == "pk" and mach.last_m + 44 > now + 4: continue
            score = v_streams.index(s)
            if op.kind == "pk": score -= 100
            if not mach.fits(op): score += 50
            if best is None or score < best[0]: best = (score, op)
        if best:
            put(best[1]); continue
        if try_d(1): continue
        cand = []
        for s in S:
            op = head(s)
            if op is None: continue
            r = ready(op)
            if r is None: continue
            st = max(r, mach.start_time(op))
            if op.kind in IS_LDS and lds_out(mach.t) >= 15: st = max(st, lds_done[-15])
            st = max(st, now + 4 * em.states_needed(op))
            cand.append((st, op.idx, op))
        assert cand, "deadlock in schedule: " + str({s: head(s) for s in S})
        st, _, op = min(cand)
        short = max([em.states_needed(o) for s_, o, r, ok in vc if not ok and r <= st + 32] + [0])
        if op.kind == "m" and st - now >= 8 and short:
            em.emit(Op(f"s_nop {min(short, (st - now) // 4) - 1}"))
            continue
        if trace is not None and st > now + 4:
            trace.append((now, st - now, op.stream, op.text))
        put(op, st)
        if op.kind == "m": try_d(dlimit)
    return order
```

```python
import math, struct, sys, argparse
from asmlib import Op, Emitter, schedule

NAME = "standalone__modern_conv_block_slak__vision_kernel"

K0 = -2.0 * math.sqrt(2.0 / math.pi) * math.log2(math.e)
K1 = K0 * 0.044715
CS = -(abs(K1) ** (1.0 / 3.0))
KK = K0 / CS


def f32(x): return "0x%08x" % struct.unpack("<I", struct.pack("<f", x))[0]
def f16bits(x): return struct.unpack("<H", struct.pack("<e", x))[0]


LDS_TOTAL = 163840
STG = [71680, 100096, 121856]
ROWB = 2176
CONVA = 143616
TP = 93952
TN = TP + 65536
TP_DW, TN_DW = 1536, 1088
SPARE = 93440
BVEC = 93184
SUMS = 155392
BIASV = SUMS + 1536
MEANP = BIASV + 384
assert MEANP + 16 <= 157440 and TN + TN_DW * 4 == LDS_TOTAL


def w1_addr(f): return f * 1024 if f < 70 else 157440 + (f - 70) * 1024
def w2_addr(f): return 71680 + f * 1024 if f < 21 else 100096 + (f - 21) * 1024
def raw2_addr(row): return 71680 + row * 192 if row < 112 else 100096 + (row - 112) * 192


S_X, S_OUT, S_WS, S_W1, S_W2, S_DW, S_G, S_B, S_DBG, S_CODE = 4, 8, 12, 16, 20, 24, 28, 32, 36, 40
S_KA = 44
S_WAVE, S_Y0, S_X0, S_T0, S_T1, S_T2, S_T3 = 62, 63, 64, 65, 66, 67, 68
S_M0 = 70
S_ROW = 76
S_K16, S_TBASE, S_SCALE, S_UNSC, S_DELTA, S_64, S_128, S_SHARD = 84, 85, 86, 87, 88, 89, 90, 91
S_SAVE = 92
S_ST = 94
S_MUL4 = 96
S_CNT = 97
S_W2M = 69
S_PF = 100
S_H, S_HT = 3, 101
S_RET = 98
S_MODE = 92


def srd(b): return f"s[{b}:{b+3}]"
def v(n, k=1): return f"v{n}" if k == 1 else f"v[{n}:{n+k-1}]"
def a(n, k=1): return f"a{n}" if k == 1 else f"a[{n}:{n+k-1}]"


V_TID = 0
V_LANE16 = 1
V_FB1 = 2
V_FB2 = 3
V_IDX = 4
V_CA = 5
V_CB = 6
V_DMA = 12
V_G = 18
V_BB = 20
V_FLAG = 21
V_SQ = 22
V_LN = 46
V_E = 62
V_B = 70
V_A = 86
V_POOL = 102
V_PF = 158
V_STAMP = 159
V_Y = 160


def A_LN(p, t): return 24 * p if t == 0 else 96 + 24 * (p & 1)


A_CVB = 72
A_CVA = 144
A_TI = 156
A_ZERO = 164
A_W = 192
A_H = 96
A_X = 176
A_BIAS = 240
A_ONES = 246
A_ID = 250
A_PFD = 255
HOFF = 0x100000
WS_BYTES = HOFF + 1024 * 3 * 24576


class Gen:
    def __init__(self, cfg):
        self.cfg = cfg
        self.em = Emitter(cfg.cover)
        self.nstamp = 0

    def seq(self, lines):
        for l in lines.strip().split("\n"):
            l = l.split(";")[0].strip()
            if l:
                self.em.emit(Op(l))

    def stamp(self):
        if not self.cfg.stamps: return
        i = self.nstamp; self.nstamp += 1
        self.seq(f"""
            s_memtime s[{S_ST}:{S_ST+1}]
            s_waitcnt lgkmcnt(0)
            v_writelane_b32 v{V_STAMP}, s{S_ST}, {i}
            s_memrealtime s[{S_ST}:{S_ST+1}]
            s_waitcnt lgkmcnt(0)
            v_writelane_b32 v{V_STAMP}, s{S_ST}, {32 + i}
        """)

    def code_prefetch(self):
        self.em.emit(Op(f"s_mov_b32 s{S_PF}, {self.pf_next}"))
        o = Op(f"buffer_load_dword a{A_PFD}, v{V_PF}, {srd(S_CODE)}, s{S_PF} offen", lat=1500); o.defs = []
        self.em.emit(o)
        self.pf_next += 8192

    def frag_base(self, addr):
        b = addr >> 16
        return (V_LANE16, V_FB1, V_FB2)[b], addr & 0xffff

    def table_routine(self):
        s = self.seq
        s("L_tab:")
        for k in range(11):
            neg = k >= 6
            i0 = 256 * k - (TP_DW if neg else 0)
            sg = "" if neg else "-"
            s(f"v_add_u32 v50, {i0}, v0" if i0 else "v_mov_b32 v50, v0")
            if k == 10: s(f"v_min_u32 v50, {TN_DW - 1}, v50")
            s(f"""
                v_lshl_or_b32 v52, v50, 17, v46
                v_add_u32 v53, 0x10000, v52
                v_mul_f32_e64 v52, {sg}v52, s{S_UNSC}
                v_mul_f32_e64 v53, {sg}v53, s{S_UNSC}
                v_fma_f32 v54, v52, v52, v47
                v_fma_f32 v55, v53, v53, v47
                v_mul_f32 v54, v52, v54
                v_mul_f32 v55, v53, v55
                v_exp_f32 v54, v54
                v_exp_f32 v55, v55
                v_lshlrev_b32 v50, 2, v50
                v_add_f32 v54, 1.0, v54
                v_add_f32 v55, 1.0, v55
                v_rcp_f32 v54, v54
                v_rcp_f32 v55, v55
                v_add_u32 v50, {TN if neg else TP}, v50
                v_mul_f32 v52, v52, v54
                v_mul_f32 v53, v53, v55
                v_cvt_pk_f16_f32 v54, v52, v53
                v_mul_f32 v52, v52, v52
                v_mul_f32 v53, v53, v53
                v_cvt_pk_bf16_f32 v52, v52, v53
                v_cndmask_b32 v{56 + (k & 1)}, v52, v54, s[{S_MODE}:{S_MODE+1}]
                ds_write_b32 v50, v{56 + (k & 1)}
            """)
        s(f"s_waitcnt lgkmcnt(0)\ns_setpc_b64 s[{S_RET}:{S_RET+1}]")

    def call_table(self):
        self.seq(f"""
            v_mov_b32 v46, 0x8000
            v_mov_b32 v47, {f32(KK)}
            s_waitcnt lgkmcnt(0)
            s_call_b64 s[{S_RET}:{S_RET+1}], L_tab
        """)
        self.em.mach.t += 1400

    def mk_srd(self, base, ka, size):
        self.seq(f"""
            s_mov_b32 s{base}, s{S_KA+2*ka}
            s_and_b32 s{base+1}, s{S_KA+2*ka+1}, 0xffff
            s_mov_b32 s{base+2}, {size}
            s_mov_b32 s{base+3}, 0x20000
        """)

    def prologue(self):
        c = self.cfg
        s = self.seq
        s(f"""
            s_cmp_ge_u32 s2, 0x100
            s_cbranch_scc0 L_go
            s_endpgm
        """)
        self.table_routine()
        s("L_redo:")
        self.call_table()
        s("s_barrier\ns_branch L_back")
        while self.em.mach.addr % 64: s("s_nop 0")
        self.em.mach.t = 0
        s(f"""
            L_go:
            s_load_dwordx16 s[{S_KA}:{S_KA+15}], s[0:1], 0
            s_load_dwordx2 s[{S_KA+16}:{S_KA+17}], s[0:1], 64
            s_getpc_b64 s[{S_CODE}:{S_CODE+1}]
            L_pc:
        """)
        self.pc_addr = self.em.mach.addr
        s(f"""
            s_sub_u32 s{S_CODE}, s{S_CODE}, {self.pc_addr}
            s_subb_u32 s{S_CODE+1}, s{S_CODE+1}, 0
            s_and_b32 s{S_CODE+1}, s{S_CODE+1}, 0xffff
            s_mov_b32 s{S_CODE+2}, L_last-{NAME}
            s_mov_b32 s{S_CODE+3}, 0x20000
            v_and_b32 v47, 63, v0
            v_lshlrev_b32 v{V_PF}, 7, v47
        """)
        self.pc_addr = 0
        self.pf_next = 0
        if c.prefetch:
            for _ in range(c.pf0): self.code_prefetch()
        s(f"""
            v_lshrrev_b32 v46, 6, v0
            v_lshlrev_b32 v{V_LANE16}, 4, v47
            v_readfirstlane_b32 s{S_WAVE}, v46
            s_and_b32 s{S_SHARD}, s2, 7
            s_lshr_b32 s{S_T0}, s2, 3
            s_lshr_b32 s{S_T1}, s{S_T0}, 4
            s_lshl_b32 s{S_Y0}, s{S_SHARD}, 1
            s_add_u32 s{S_Y0}, s{S_Y0}, s{S_T1}
            s_lshl_b32 s{S_Y0}, s{S_Y0}, 5
            s_and_b32 s{S_X0}, s{S_T0}, 15
            s_lshl_b32 s{S_X0}, s{S_X0}, 5
            v_and_b32 v48, 31, v47
            v_lshrrev_b32 v49, 5, v47
            s_lshl_b32 s{S_T2}, s{S_Y0}, 9
            s_add_u32 s{S_T2}, s{S_T2}, s{S_X0}
            s_sub_u32 s{S_T2}, s{S_T2}, 513
            s_mul_i32 s{S_T2}, s{S_T2}, 0xc0
            s_sub_u32 s{S_T1}, s{S_X0}, 1
            v_mov_b32 v55, 0x80000000
            s_lshl_b32 s{S_T3}, s{S_WAVE}, 6
        """)
        if c.stamps: s(f"v_mov_b32 v{V_STAMP}, 0")
        self.stamp()
        for k in range(6):
            s(f"s_add_u32 s{S_T0}, s{S_T3}, {256 * k}")
            if k == 5: s(f"s_min_u32 s{S_T0}, s{S_T0}, 1296")
            s(f"""
                v_add_u32 v50, s{S_T0}, v47
                s_lshl_b32 s{S_M0+k}, s{S_T0}, 4
                v_mul_u32_u24 v51, 482, v50
                v_lshrrev_b32 v51, 16, v51
                v_mul_u32_u24 v52, 136, v51
                v_sub_u32 v52, v50, v52
                v_lshrrev_b32 v53, 2, v52
                v_lshrrev_b32 v54, 4, v52
                v_xor_b32 v52, v52, v54
                v_and_b32 v52, 3, v52
                v_lshl_add_u32 v51, v51, 9, v53
                v_add_u32 v53, s{S_T1}, v53
                v_mul_u32_u24 v51, 0xc0, v51
                v_cmp_gt_u32 vcc, 0x200, v53
                v_lshl_add_u32 v51, v52, 4, v51
                v_add_u32 v51, s{S_T2}, v51
                v_cndmask_b32 v{V_DMA+k}, v55, v51, vcc
            """)
        for k in range(4):
            s(f"""
                v_lshrrev_b32 v51, 5, v0
                v_add_u32 v51, {8 * k}, v51
                v_mul_u32_u24 v52, 57, v51
                v_lshrrev_b32 v52, 9, v52
                v_mul_u32_u24 v53, 9, v52
                v_sub_u32 v53, v51, v53
                v_mul_u32_u24 v53, 96, v53
                v_lshl_add_u32 v53, v52, 5, v53
                v_add_lshl_u32 v{22 + k}, v53, v48, 1
            """)
        s(f"""
            v_mul_u32_u24 v50, 12, v48
            v_mul_u32_u24 v51, 3072, v49
            v_add_u32 v50, v50, v51
            s_mov_b32 s{S_64}, 64
            s_movk_i32 s{S_128}, 0x80
            s_waitcnt lgkmcnt(0)
        """)
        self.mk_srd(S_X, 0, 50331648)
        for op in self.dma_ops(0, None): self.em.emit(op)
        self.mk_srd(S_DW, 1, 1728)
        for k in range(4): s(f"buffer_load_ushort v{22 + k}, v{22 + k}, {srd(S_DW)}, 0 offen")
        self.mk_srd(S_W1, 2, 73728)
        for i in range(3):
            s(f"""
                s_mul_i32 s{S_T0}, s{S_WAVE}, 3
                s_add_u32 s{S_T0}, s{S_T0}, {i}
                s_lshr_b32 s{S_T1}, s{S_T0}, 1
                s_and_b32 s{S_T0}, s{S_T0}, 1
                s_mul_i32 s{S_T2}, s{S_T0}, 36
                s_add_u32 s{S_T2}, s{S_T2}, s{S_T1}
                s_mul_i32 s{S_T1}, s{S_T1}, {16 * 768}
                s_mul_i32 s{S_T0}, s{S_T0}, 384
                s_add_u32 s{S_T0}, s{S_T0}, s{S_T1}
                s_add_u32 s{S_T1}, s{S_T0}, {8 * 768}
            """)
            for j in range(8):
                s(f"buffer_load_dwordx3 {v(62 + 32 * i + 4 * j, 3)}, v50, {srd(S_W1)}, s{S_T0 if j < 4 else S_T1} offen offset:{(j & 3) * 768}")
            s(f"""
                s_cmp_ge_u32 s{S_T2}, 40
                s_cselect_b32 s{S_T3}, {157440 - 70 * 1024}, 0
                s_lshl_b32 s{S_T2}, s{S_T2}, 10
                v_add_u32 v{32 + 2 * i}, s{S_T2}, v{V_LANE16}
                v_add_u32 v{33 + 2 * i}, s{S_T3}, v{32 + 2 * i}
            """)
        for q in (1, 2):
            for op in self.dma_ops(q, None): self.em.emit(op)
        for base, ka, size in ((S_W2, 3, 73728), (S_G, 4, 768), (S_B, 5, 768), (S_OUT, 6, 50331648), (S_DBG, 7, 256), (S_WS, 8, c.ws_bytes)):
            self.mk_srd(base, ka, size)
        s(f"""
            v_min_u32 v50, 47, v47
            s_mul_i32 s{S_T0}, s{S_WAVE}, 96
            v_lshl_add_u32 v50, v50, 1, s{S_T0}
            v_and_b32 v52, 31, v50
            v_lshrrev_b32 v51, 5, v50
            v_mad_u32_u24 v52, v52, 6, v51
            s_cmp_ge_u32 s{S_WAVE}, 2
            s_cselect_b32 s{S_T0}, 186, 0
            v_add_lshl_u32 v52, v52, s{S_T0}, 1
            buffer_load_ushort v{V_G}, v52, {srd(S_G)}, 0 offen
            buffer_load_ushort v{V_G+1}, v52, {srd(S_G)}, 0 offen offset:12
            buffer_load_ushort v{V_BB}, v52, {srd(S_B)}, 0 offen
            buffer_load_ushort v{V_FLAG}, v52, {srd(S_B)}, 0 offen offset:12
        """)
        s(f"""
            s_cmp_ge_u32 s2, 8
            s_cbranch_scc1 L_noinit
            s_cmp_lg_u32 s{S_WAVE}, 3
            s_cbranch_scc1 L_noinit
            v_mov_b32 v52, 0
            v_mov_b32 v53, 0
            v_mov_b32 v54, 0
            v_mov_b32 v55, 0
            s_lshl_b32 s{S_T0}, s2, 11
            s_lshl_b32 s{S_T1}, s2, 8
            s_add_u32 s{S_T1}, s{S_T1}, 0x10000
            v_and_b32 v50, 7, v47
            v_lshlrev_b32 v50, 11, v50
            buffer_store_dwordx4 v[52:55], v{V_LANE16}, {srd(S_WS)}, s{S_T0} offen sc1
            buffer_store_dwordx4 v[52:55], v{V_LANE16}, {srd(S_WS)}, s{S_T0} offen offset:1024 sc1
            buffer_store_dword v52, v50, {srd(S_WS)}, s{S_T1} offen sc1
            s_waitcnt vmcnt(0)
            v_mov_b32 v52, 1
            v_mov_b32 v53, 0
            s_mov_b64 exec, 1
            buffer_atomic_add v52, v53, {srd(S_DBG)}, 0 offen
            s_mov_b64 exec, -1
            L_noinit:
        """)
        s(f"""
            v_add_u32 v{V_FB1}, 0x10000, v{V_LANE16}
            v_add_u32 v{V_FB2}, 0x20000, v{V_LANE16}
            s_mov_b32 s{S_K16}, 0x{f16bits(KK):04x}{f16bits(KK):04x}
            s_mov_b32 s{S_TBASE}, {TP}
            s_mov_b32 s{S_UNSC}, {f32(2.0 ** 112)}
            s_mov_b64 s[{S_MODE}:{S_MODE+1}], 0
            v_and_b32 v50, 3, v48
            v_xor_b32 v51, 1, v50
            v_lshl_or_b32 v50, v51, 2, v50
            v_mul_u32_u24 v{V_IDX}, 0x1111, v50
            v_bfe_u32 v50, v48, 3, 1
            v_lshlrev_b32 v51, 4, v48
            v_add_u32 v51, {CONVA}, v51
            v_cmp_eq_u32 vcc, v50, v49
            v_mov_b32 v52, 0x40000000
            v_cndmask_b32 v{V_CA}, v52, v51, vcc
            s_mul_i32 s{S_T0}, s{S_WAVE}, {2 * ROWB}
            s_add_u32 s{S_T0}, s{S_T0}, {STG[0]}
        """)
        for dx in range(3):
            s(f"""
                v_add_u32 v50, {dx}, v48
                v_bfe_u32 v51, v50, 2, 2
                v_lshlrev_b32 v52, 1, v49
                v_xor_b32 v51, v51, v52
                v_lshl_add_u32 v51, v50, 2, v51
                v_lshl_add_u32 v{V_CB + 2 * dx}, v51, 4, s{S_T0}
                v_xor_b32 v51, 1, v51
                v_lshl_add_u32 v{V_CB + 2 * dx + 1}, v51, 4, s{S_T0}
            """)
        s(f"""
            s_lshl_b32 s{S_T0}, s{S_WAVE}, 1
            s_add_u32 s{S_T0}, s{S_T0}, s{S_Y0}
            s_lshl_b32 s{S_T0}, s{S_T0}, 9
            s_add_u32 s{S_T0}, s{S_T0}, s{S_X0}
            s_mul_i32 s{S_ROW}, s{S_T0}, 0xc0
            s_cmp_ge_u32 s{S_WAVE}, 1
            s_cselect_b32 s{S_W2M}, {100096 - 21 * 1024 - 71680}, 0
            s_lshl_b32 s{S_T0}, s{S_WAVE}, 10
            s_add_u32 s{S_T0}, s{S_T0}, {71680 + 5 * 4096}
            s_add_u32 s{S_W2M}, s{S_W2M}, s{S_T0}
            s_lshl_b32 s{S_T0}, s2, 2
            s_add_u32 s{S_T0}, s{S_T0}, s{S_WAVE}
            s_mul_i32 s{S_T0}, s{S_T0}, {3 * 24576}
            s_add_u32 s{S_H}, s{S_T0}, {HOFF}
        """)
        for i in range(1, 8): s(f"s_add_u32 s{S_ROW + i}, s{S_ROW}, {98304 * (8 * (i >> 1) + (i & 1))}")
        for r in range(4): s(f"v_accvgpr_write_b32 a{A_ZERO + r}, 0")
        s(f"""
            v_bfe_u32 v50, v48, 2, 1
            v_cmp_eq_u32 vcc, v50, v49
            v_lshrrev_b32 v50, 3, v48
            v_bfe_u32 v51, v48, 1, 1
            v_lshl_or_b32 v50, v50, 1, v51
            v_mov_b32 v51, 15
            v_cndmask_b32 v50, v51, v50, vcc
            v_and_b32 v51, 1, v48
            v_lshlrev_b32 v51, 4, v51
            v_mov_b32 v52, 0x3c00
            v_lshlrev_b32 v52, v51, v52
        """)
        for r in range(8):
            s(f"""
                v_cmp_eq_u32 vcc, {r}, v50
                v_cndmask_b32 v{53 + (r & 1)}, 0, v52, vcc
                v_accvgpr_write_b32 a{A_TI + r}, v{53 + (r & 1)}
            """)
        s(f"""
            v_lshrrev_b32 v58, 4, v48
            v_bfe_u32 v51, v48, 2, 1
            v_lshl_or_b32 v58, v58, 1, v51
            v_lshlrev_b32 v59, 4, v0
            v_add_u32 v59, {CONVA}, v59
            v_mov_b32 v30, {SPARE}
            v_mov_b32 v57, 0
            ds_write_b32 v30, v57
        """)
        self.call_table()
        for k in range(4):
            for g_ in range(4):
                s(f"v_cmp_eq_u32 vcc, {g_}, v58\nv_cndmask_b32 v{50 + 4 * (k & 1) + g_}, 0, v{22 + k}, vcc")
            if k == 3:
                s(f"""
                    v_cmp_gt_u32 vcc, 96, v0
                    v_mov_b32 v60, 0x40000000
                    v_cndmask_b32 v59, v60, v59, vcc
                """)
            s(f"ds_write_b128 v59, {v(50 + 4 * (k & 1), 4)} offset:{4096 * k}")
        o = Op("s_barrier", tr=[("dma", 0)])
        s("s_waitcnt lgkmcnt(0)")
        self.em.emit(o)
        self.stamp()

    def w1_prep(self):
        L = []
        raw = [62 + 4 * j + d for j in range(24) for d in range(3)]
        L += ["v_pk_maximum3_f16 v28, v62, v63, v63", "v_pk_minimum3_f16 v29, v62, v63, v63"]
        for r in range(2, 72, 2):
            L += [f"v_pk_maximum3_f16 v28, v28, v{raw[r]}, v{raw[r+1]}", f"v_pk_minimum3_f16 v29, v29, v{raw[r]}, v{raw[r+1]}"]
        L += ["v_and_b32 v28, 0x7fff7fff, v28", "v_and_b32 v29, 0x7fff7fff, v29", "v_pk_max_u16 v28, v28, v29",
              "v_lshrrev_b32 v29, 16, v28", "v_and_b32 v28, 0xffff, v28", "v_max_u32 v28, v28, v29"]
        ops = [Op(x, stream="VP") for x in L]
        ops.append(Op("ds_max_u32 v30, v28", stream="DP", tw=[("max",)]))
        ops += [Op(x, stream="VP") for x in ("v_mov_b32 v26, 0x05040100", "v_mov_b32 v27, 0x07060302",
                                             f"v_lshl_or_b32 v{V_BB}, v{V_FLAG}, 16, v{V_BB}",
                                             f"v_lshlrev_b32 v{V_G}, 16, v{V_G}", f"v_lshlrev_b32 v{V_G+1}, 16, v{V_G+1}")]
        for i in range(3):
            for c6 in range(6):
                d, e = c6 >> 1, c6 & 1
                R = lambda j: 62 + 32 * i + 4 * j + d
                t0 = 38 + 4 * (c6 & 1)
                ops += [Op(f"v_perm_b32 v{t0 + t}, v{R(2*t+1)}, v{R(2*t)}, v{26 + e}", stream="VP") for t in range(4)]
                ops.append(Op(f"ds_write_b128 v{32 + 2 * i + (c6 == 5)}, {v(t0, 4)} offset:{6144 * c6}", stream="DP", tw=[("w1",)]))
        return ops

    def delta_ops(self):
        ops = [Op("ds_read_b32 v28, v30", stream="DP", tr=[("bar", 2)])]
        L = [f"v_readfirstlane_b32 s{S_DELTA}, v28", f"s_lshr_b32 s{S_DELTA}, s{S_DELTA}, 7", f"s_sub_i32 s{S_DELTA}, s{S_DELTA}, {127 + 2}",
             f"s_max_i32 s{S_DELTA}, s{S_DELTA}, 0", f"s_min_i32 s{S_DELTA}, s{S_DELTA}, 12", f"s_add_u32 s{S_MUL4}, s{S_DELTA}, 112",
             f"s_lshl_b32 s{S_MUL4}, s{S_MUL4}, 23", f"s_sub_u32 s{S_SCALE}, {f32(-CS)}, s{S_MUL4}", f"s_add_u32 s{S_UNSC}, 0x3f800000, s{S_MUL4}"]
        ops += [Op(x, stream="VP") for x in L]
        ops += [Op(f"v_mov_b32 v{V_SQ + r}, 0", stream="VP") for r in range(24)]
        return ops

    def dma_ops(self, q, tr, stream="DX"):
        p, cb = divmod(q, 3)
        ops = []
        so = ("0", f"s{S_64}", f"s{S_128}")[cb]
        for k in range(6):
            ops.append(Op(f"s_add_u32 m0, s{S_M0+k}, {STG[cb]}", stream=stream, tr=tr or ()))
            ops.append(Op(f"buffer_load_dwordx4 v{V_DMA+k}, {srd(S_X)}, {so} offen {self.cfg.xpol} lds", stream=stream,
                          tw=[("dma", q)], lat=self.cfg.dma_lat))
        return ops

    def conv_unit(self, q, bar_tok):
        p, cb = divmod(q, 3)
        ops = []
        Y = [V_Y + 48 * t + 16 * cb for t in range(2)]
        for t in range(2):
            ops.append(Op(f"v_mfma_f32_32x32x16_bf16 {v(Y[t],16)}, {a(A_ZERO,4)}, {a(A_ZERO,4)}, 0", stream="MC"))
        for dx in range(3):
            for ir in range(4):
                bb = A_CVB + 8 * (self.cvb % 3); self.cvb += 1
                for h in range(2):
                    ops.append(Op(f"ds_read_b128 {a(bb + 4*h,4)}, v{V_CB + 2*dx + h} offset:{STG[cb] - STG[0] + ir * ROWB}",
                                  stream="DC", tr=[bar_tok], tw=[("rd", q)]))
                if ir < 3:
                    ab = A_CVA + 4 * (self.cva % 3); self.cva += 1
                    ops.append(Op(f"ds_read_b128 {a(ab,4)}, v{V_CA} offset:{(cb * 9 + ir * 3 + dx) * 512}", stream="DC",
                                  tw=[("rd", q)]))
                    cur = ab
                    ops.append(Op(f"v_smfmac_f32_32x32x32_bf16 {v(Y[0],16)}, {a(cur,4)}, {a(bb,8)}, v{V_IDX}", stream="MC"))
                if ir > 0:
                    ops.append(Op(f"v_smfmac_f32_32x32x32_bf16 {v(Y[1],16)}, {a(prev,4)}, {a(bb,8)}, v{V_IDX}", stream="MC"))
                prev = cur
        return ops

    def ln_stats(self, p, cb):
        ops = []
        for t in range(2):
            Y = V_Y + 48 * t + 16 * cb
            S, Q = V_LN + 4 * t, V_LN + 4 * t + 2
            g = []
            for k in range(8):
                y = v(Y + 2 * k, 2)
                if cb == 0 and k == 0:
                    g.append(f"v_pk_mul_f32 {v(Q,2)}, {y}, {y}")
                else:
                    g.append(f"v_pk_fma_f32 {v(Q,2)}, {y}, {y}, {v(Q,2)}")
                if cb == 0 and k == 0: continue
                if cb == 0 and k == 1:
                    g.append(f"v_pk_add_f32 {v(S,2)}, {v(Y,2)}, {y}")
                else:
                    g.append(f"v_pk_add_f32 {v(S,2)}, {v(S,2)}, {y}")
            ops += [Op(x, stream="VL") for x in g]
        return ops

    def ln_finish(self, p):
        L = []
        for t in range(2):
            S, Q = V_LN + 4 * t, V_LN + 4 * t + 2
            L += [f"v_add_f32 v{S}, v{S}, v{S+1}", f"v_add_f32 v{Q}, v{Q}, v{Q+1}"]
        for t in range(2):
            S, Q = V_LN + 4 * t, V_LN + 4 * t + 2
            L += [f"v_permlane32_swap_b32 v{S}, v{Q}"]
        for t in range(2):
            S, Q = V_LN + 4 * t, V_LN + 4 * t + 2
            L += [f"v_add_f32 v{S}, v{S}, v{Q}"]
        for t in range(2):
            S, Q = V_LN + 4 * t, V_LN + 4 * t + 2
            L += [f"v_mov_b32 v{Q}, v{S}"]
        for t in range(2):
            S, Q = V_LN + 4 * t, V_LN + 4 * t + 2
            L += [f"v_permlane32_swap_b32 v{S}, v{Q}"]
        stages = [
            lambda S, Q: f"v_mul_f32 v{S}, {f32(1/96)}, v{S}",
            lambda S, Q: f"v_mul_f32 v{Q}, {f32(1/96)}, v{Q}",
            lambda S, Q: f"v_fma_f32 v{Q}, -v{S}, v{S}, v{Q}",
            lambda S, Q: f"v_max_f32 v{Q}, 0, v{Q}",
            lambda S, Q: f"v_add_f32 v{Q}, {f32(1e-5)}, v{Q}",
            lambda S, Q: f"v_rsq_f32 v{Q}, v{Q}",
            lambda S, Q: f"v_mul_f32 v{Q}, {f32(CS) if S != V_LN else 's%d' % S_SCALE}, v{Q}",
            lambda S, Q: f"v_mul_f32_e64 v{S}, -v{S}, v{Q}",
        ]
        for st in stages:
            for t in range(2):
                L.append(st(V_LN + 4 * t, V_LN + 4 * t + 2))
        ops = [Op(x, stream="VL") for x in L]
        for t in range(2):
            S, Q = V_LN + 4 * t, V_LN + 4 * t + 2
            for k in range(24):
                y = v(V_Y + 48 * t + 2 * k, 2)
                ops.append(Op(f"v_pk_fma_f32 {y}, {y}, {v(Q,2)}, {v(S,2)} op_sel_hi:[1,0,0]", stream="VL"))
        n = 0
        pend = []
        for t in range(2):
            for k in range(24):
                tmp = V_LN + 8 + (n % 8); n += 1
                ops.append(Op(f"v_cvt_pk_bf16_f32 v{tmp}, v{V_Y + 48*t + 2*k}, v{V_Y + 48*t + 2*k + 1}", stream="VL"))
                pend.append(Op(f"v_accvgpr_write_b32 a{A_LN(p, t) + k}, v{tmp}", stream="VL"))
                if len(pend) > 2: ops.append(pend.pop(0))
        return ops + pend

    def w_read(self, addr, buf, stream, tr=()):
        b, off = self.frag_base(addr)
        return Op(f"ds_read_b128 {a(buf,4)}, v{b} offset:{off}", stream=stream, tr=tr), buf

    def chain(self, acc, A, B, E=V_E, n=8):
        CV = [f"v_cvt_pk_f16_f32 v{A+i}, v{acc+2*i}, v{acc+2*i+1}" for i in range(n)]
        T = [f"v_pk_fma_f16 v{B+i}, v{A+i}, v{A+i}, s{S_K16}" for i in range(n)]
        Z = [f"v_pk_mul_f16 v{B+i}, v{A+i}, v{B+i}" for i in range(n)]
        hi = "dst_sel:WORD_1 dst_unused:UNUSED_PRESERVE src0_sel:WORD_1"
        def tr(op):
            l = []
            for i in range(n + 2):
                if i < n: l.append(f"{op} v{E+i}, v{B+i}")
                if i >= 2: l.append(f"{op}_sdwa v{E+i-2}, v{B+i-2} {hi}")
            return l
        D = [f"v_pk_add_f16 v{B+i}, v{E+i}, 1.0 op_sel_hi:[1,0]" for i in range(n)]
        Y = [f"v_pk_mul_f16 v{A+i}, v{A+i}, v{E+i}" for i in range(n)]
        head = []
        for i in range(n + 2):
            if i < n: head.append(CV[i])
            if 1 <= i < n + 1: head.append(T[i-1])
            if i >= 2: head.append(Z[i-2])
        return head, tr("v_exp_f16"), D, tr("v_rcp_f16"), Y

    def table_ops(self, acc, n, mn):
        ad = [Op(f"v_mad_u32_u16 v{acc+i}, v{acc+i}, 2, s{S_TBASE} op_sel:[1,0,0,0]", stream="VN") for i in range(n)]
        ga = [Op(f"{mn(i)} v{acc+i}, v{acc+i}", stream="DG", kind="dsg") for i in range(n)]
        return ad, ga

    def act_stream(self, N, bufs, g1, g2):
        ops = []
        O = lambda l, st: [Op(x, stream=st) for x in l]
        AD = lambda k: self.table_ops(bufs(k)[0], 16, lambda i: "ds_read_u16_d16_hi")
        ch = {}
        def CH(k):
            if k not in ch:
                b = bufs(k); ch[k] = self.chain(b[1], b[2], b[3])
            return ch[k]
        ops += g1(0, 0) + g1(0, 1)
        ad, ga = AD(0)
        ga[0].tr.add(("tabok",))
        ops += ad + ga + O(CH(0)[0], "VN") + g1(1, 0) + g2(0, 0)
        for k in range(N):
            head, E, D, R, Y = CH(k)
            last = k + 1 == N
            if not last: ops += g1(k + 1, 1)
            ops += O(E, "VT")
            D = O(D, "VN")
            if not last:
                ad, ga = AD(k + 1)
                lead = self.cfg.ad_lead
                ops += ad[:lead]; ad = ad[lead:]
                for i in range(8):
                    ops += ad[len(ad) * i // 8: len(ad) * (i + 1) // 8] + [D[i]]
                ops += ga
            else:
                ops += D
            if k + 2 < N: ops += g1(k + 2, 0)
            ops += O(R, "VT")
            Y = O(Y, "VN")
            if not last:
                h2 = O(CH(k + 1)[0], "VN")
                ops += h2[:8]
                for i in range(8): ops += h2[8 + 2 * i: 10 + 2 * i] + [Y[i]]
            else:
                ops += Y
            if not last: ops += g2(k + 1, 0)
            ops += g2(k, 1)
        return ops

    def phase1(self):
        c = self.cfg
        self.cvb = self.cva = 0
        ops = []
        bar = lambda name, tr: Op("s_barrier", stream="X", tr=tr, tw=[name])
        adv = lambda: [Op(f"v_add_u32 v{V_DMA+k}, {8 * 98304}, v{V_DMA+k}", stream="VL") for k in range(6)]
        ops.append(Op("s_nop 0", stream="X", tw=[("bar", 0), ("dma", 0), ("dma", 1), ("dma", 2)]))
        landed = lambda f: max([d for q, d in self.em.vmq if f(q)] + [0])
        prep = self.w1_prep()
        prep[0].earliest = landed(lambda q: ("v", 62 + 32 * 2 + 28) in q.defs)
        ops += prep
        def unit(q):
            r = []
            if q > 0:
                r.append(bar(("bar", q), [("rd", q - 1), ("dma", q)] + ([("max",)] if q == 2 else [])))
                if q < 3: r[-1].earliest = landed(lambda o: ("dma", q) in o.tw)
                else: r[-1].tr.add(("pace", 12 * (q // 3 - 1) + c.upace[q % 3]))
                if q + 2 < 12 and q != 3:
                    if (q + 2) % 3 == 0: r += adv()
                    r += self.dma_ops(q + 2, [("bar", q)])
            if q == 2: r += self.delta_ops()
            r += self.conv_unit(q, ("bar", q))
            st = self.ln_stats(q // 3, q % 3)
            if q == 3: st[0].tr.add(("tabok",))
            r += st
            if q == 2:
                r.append(bar(("bar", "2b"), [("rd", 2), ("w1",)]))
                r += self.dma_ops(5, [("bar", "2b")])
            if q % 3 == 2: r += self.ln_finish(q // 3)
            if q == 2:
                r[-1].tw.add(("ln0",))
                chk = Op(f"s_cmp_lg_u32 s{S_DELTA}, 0", stream="X", tr=[("ln0",)], tw=[("tabok",)])
                chk.group = [Op("s_cbranch_scc1 L_redo"), Op("L_back:")]
                r.append(chk)
            return r
        for q in range(3): ops += unit(q)
        def bufs(k):
            A = V_A + 8 * (k % 2) if k < 36 else V_Y + 8 * (k - 36)
            return (V_POOL + 16 * (k % 2), V_POOL + 32, A, V_B + 8 * (k % 2))
        self.wn = 0
        frag = {}
        extra = {}
        def g1(k, t):
            p, ch = divmod(k, 12); r = []
            if (k, t) in extra: r += extra[(k, t)]()
            acc = bufs(k)[t]
            for ks in range(6):
                if t == 0:
                    op, frag[ks] = self.w_read(w1_addr(6 * ch + ks), A_W + 4 * (self.wn % 12), "D1", [("bar", "2b")] if k == 0 else ()); self.wn += 1
                    r.append(op)
                cc = "0" if ks == 0 else v(acc, 16)
                ln, w = a(A_LN(p, t) + 4 * ks, 4), a(frag[ks], 4)
                r.append(Op(f"v_mfma_f32_32x32x16_bf16 {v(acc,16)}, {ln if t == 0 else w}, {w if t == 0 else ln}, {cc}", stream="M1"))
            if t == 1: r[-1].tw.add(("pace", k))
            return r
        def g2(k, t):
            p, ch = divmod(k, 12)
            sq = V_SQ + 2 * ch; b = bufs(k)
            if t == 0:
                return [Op(f"v_pk_add_f32 {v(sq,2)}, {v(sq,2)}, {v(b[0]+2*i,2)}", stream="VW") for i in reversed(range(8))]
            r = []
            if p < 3:
                if ch % 2 == 0: r.append(Op(f"s_add_u32 s{S_HT}, s{S_H}, {24576 * p + 2048 * ch}", stream="DH"))
                for ks in range(2):
                    r.append(Op(f"buffer_store_dwordx4 {v(b[2] + 4*ks,4)}, v{V_LANE16}, {srd(S_WS)}, s{S_HT} offen offset:{2048 * (ch & 1) + 1024 * ks} {c.hpol}", stream="DH"))
            X = bufs(k + 1)[0]
            for ks in range(2):
                r.append(Op(f"v_mfma_f32_32x32x16_f16 {v(X,16)}, {v(b[2] + 4*ks,4)}, {a(A_TI + 4*ks,4)}, {'0' if ks == 0 else v(X,16)}", stream="MT"))
            r += [Op(f"v_pk_fma_f32 {v(sq,2)}, {v(X+2*i,2)}, {v(X+2*i,2)}, {v(sq,2)}", stream="VW") for i in range(8)]
            return r
        for p in range(3):
            extra[(12 * p + 11, 1)] = (lambda p=p: unit(3 * p + 3) + unit(3 * p + 4) + unit(3 * p + 5))
        def tail():
            r = [bar(("bar", 12), [("rd", 11)])]
            for k in range(18):
                r.append(Op(f"s_add_u32 s{S_T0}, s{S_T1}, {4096 * k}", stream="DX", tr=[("bar", 12)]))
                if k == 5: r.append(Op(f"s_mov_b32 m0, s{S_W2M}", stream="DX"))
                else: r.append(Op(f"s_add_u32 m0, s{S_T0}, {71680 if k < 5 else 100096 - 21 * 1024}", stream="DX"))
                r.append(Op(f"buffer_load_dwordx4 v{V_LANE16}, {srd(S_W2)}, s{S_T0} offen lds", stream="DX", tw=[("w2raw",)], lat=c.dma_lat))
            r.append(Op(f"buffer_load_dword v{V_FLAG}, v{V_CB}, {srd(S_DBG)}, 0 offen sc1", stream="DX", lat=c.dma_lat))
            r.append(Op(f"ds_write_b64 v{V_CB+1}, {a(A_ZERO,2)}", stream="DX", tr=[("bar", 12)], tw=[("w2raw",)]))
            r.append(Op(f"ds_write_b32 v{V_CB+2}, v{V_BB}", stream="DX", tr=[("bar", 12)], tw=[("w2raw",)]))
            return r
        def tail_pre():
            L = [f"s_lshl_b32 s{S_T1}, s{S_WAVE}, 10",
                 f"v_mov_b32 v{V_CB}, 0",
                 f"v_min_u32 v{V_CB+1}, 239, v0",
                 f"v_lshlrev_b32 v{V_CB+1}, 3, v{V_CB+1}",
                 f"v_add_u32 v{V_CB+1}, {SUMS}, v{V_CB+1}",
                 f"v_lshrrev_b32 v{V_CB+2}, 2, v{V_LANE16}",
                 f"v_min_u32 v{V_CB+2}, 188, v{V_CB+2}",
                 f"s_mul_i32 s{S_T3}, s{S_WAVE}, 192",
                 f"s_add_u32 s{S_T3}, s{S_T3}, {BVEC}",
                 f"v_add_u32 v{V_CB+2}, s{S_T3}, v{V_CB+2}"]
            return [Op(x, stream="VL") for x in L]
        extra[(37, 0)] = lambda: tail_pre() + tail()
        extra[(46, 0)] = lambda: [bar(("bar", 13), [("w2raw",), ("pace", 44)])]
        ops += self.act_stream(48, bufs, g1, g2)
        return self.run(ops, ["MT", "M1", "MC"], ["VW", "VL", "VP", "VN", "VT"], ["D1", "DG", "DC", "DH", "DP", "DX"], ["X"], "phase1", c.gap1)

    def run(self, ops, ms, vs, ds, xs, name, gap):
        c = self.cfg
        if c.nosched:
            for o in ops: self.em.emit(o)
            return
        tr = []
        m = self.em.mach
        t0, f0, n0 = m.t, m.fetch_stall, len(self.em.out)
        step = len(ops) // c.fine if c.stamps and c.fine else 0
        def hook(i):
            if step and i and i % step == 0 and i // step < c.fine: self.stamp()
            if c.prefetch and c.jit and self.em.out[-1].kind == "m" and self.pf_next - (m.addr - self.pc_addr) < c.jit:
                self.code_prefetch()
        schedule(self.em, ops, ms, vs, ds, xs, trace=tr, dlimit=c.dlimit, gap=gap, hook=hook, drop=set(c.abl.split(",")))
        st = {}
        for now, d, s, txt in tr: st[s] = st.get(s, 0) + d
        new = self.em.out[n0:]
        print(f"; {name}: {len(new)} instrs, model {m.t - t0} cycles, issue sum {sum(o.cost for o in new)}, fetch stalls {m.fetch_stall - f0}, "
              f"waits {sum(o.kind == 'wait' for o in new)}, nops {sum(o.cost // 4 for o in new if o.kind == 'nop')}, stalls {st}", file=sys.stderr)
        if c.trace:
            with open(f"trace_{name}.txt", "w") as f:
                prev = t0
                for o in new:
                    if o.kind == 'label': continue
                    gap = o.t_issue - prev
                    f.write(f"{o.t_issue - t0:6d} {'+%d' % gap if gap > 0 else '':>5s} {o.stream or '':3s} {o.text}\n")
                    prev = o.t_issue + o.cost

    def h_loads(self, k, stream="DH"):
        p, ch = 3 - k // 12, k % 12
        r = []
        if ch % 2 == 0: r.append(Op(f"s_add_u32 s{S_HT}, s{S_H}, {24576 * p + 2048 * ch}", stream=stream))
        for ks in range(2):
            r.append(Op(f"buffer_load_dwordx4 {a(A_H + 8 * ((k - 12) % 10) + 4*ks,4)}, v{V_LANE16}, {srd(S_WS)}, s{S_HT} offen offset:{2048 * (ch & 1) + 1024 * ks} {self.cfg.hpol2}",
                        stream=stream, lat=self.cfg.x_lat))
        return r

    def x_loads(self, n):
        p, k = 3 - n // 6, n % 6; blk, t = divmod(k, 2)
        return [Op(f"buffer_load_dwordx4 {a(A_X + 8 * (n % 2) + 4*q,4)}, v{V_CA}, {srd(S_X)}, s{S_ROW + 2*p + t} offen offset:{64*blk + 16*q} {self.cfg.xpol2}",
                   stream="DX", lat=self.cfg.x_lat) for q in range(2)]

    def switch(self):
        c = self.cfg
        s = self.seq
        W2R, BS, ACC = 62, 134, 22
        self.stamp()
        for ch in range(12): s(f"v_add_f32 v{V_SQ + 2*ch}, v{V_SQ + 2*ch}, v{V_SQ + 2*ch + 1}")
        s(f"v_lshrrev_b32 v46, 2, v{V_LANE16}\nv_add_u32 v46, {SUMS}, v46")
        for i in range(6): s(f"v_permlane32_swap_b32 v{V_SQ + 4*i}, v{V_SQ + 4*i + 2}")
        for i in range(6): s(f"v_add_f32 v{V_SQ + 4*i}, v{V_SQ + 4*i}, v{V_SQ + 4*i + 2}")
        for i in range(6): s(f"ds_add_f32 v46, v{V_SQ + 4*i} offset:{256 * i}")
        s(f"""
            v_lshlrev_b32 v58, 2, v0
            v_add_u32 v48, {SUMS}, v58
            s_cmp_ge_u32 s{S_WAVE}, 2
            s_cselect_b32 s{S_T1}, 0x7ff00000, 0
            v_add_u32 v59, s{S_T1}, v58
            s_waitcnt vmcnt(0) lgkmcnt(0)
            s_barrier
            ds_read_b32 v60, v48
            ds_read_b32 v61, v48 offset:1024
            v_readfirstlane_b32 s{S_T0}, v{V_FLAG}
            s_mov_b32 s{S_CNT}, 0
            s_cmp_ge_u32 s{S_T0}, 8
            s_cbranch_scc1 L_flag_ok
            L_flag_poll:
            buffer_load_dword v{V_FLAG}, v{V_CB}, {srd(S_DBG)}, 0 offen sc1
            s_add_u32 s{S_CNT}, s{S_CNT}, 1
            s_waitcnt vmcnt(0)
            v_readfirstlane_b32 s{S_T0}, v{V_FLAG}
            s_cmp_gt_u32 s{S_CNT}, 0x40000
            s_cbranch_scc1 L_flag_ok
            s_cmp_ge_u32 s{S_T0}, 8
            s_cbranch_scc0 L_flag_poll
            L_flag_ok:
            s_lshl_b32 s{S_T0}, s{S_SHARD}, 11
            s_waitcnt vmcnt(0) lgkmcnt(0)
            buffer_atomic_add_f32 v60, v58, {srd(S_WS)}, s{S_T0} offen
            buffer_atomic_add_f32 v61, v59, {srd(S_WS)}, s{S_T0} offen offset:1024
            s_mov_b64 s[{S_MODE}:{S_MODE+1}], -1
        """)
        if c.prefetch:
            while self.pf_next < self.em.mach.addr + c.jit + 8192: self.code_prefetch()
        self.call_table()
        s(f"""
            v_lshrrev_b32 v46, 4, v{V_LANE16}
            v_lshrrev_b32 v47, 5, v46
            v_bfe_u32 v48, v46, 2, 2
            v_lshl_add_u32 v48, v47, 2, v48
            v_mul_u32_u24 v48, 6, v48
            v_bfe_u32 v49, v46, 4, 1
            v_lshlrev_b32 v49, 4, v49
            v_and_b32 v50, 1, v46
            v_lshl_add_u32 v49, v50, 3, v49
            v_bfe_u32 v50, v46, 1, 1
            v_lshl_add_u32 v49, v50, 2, v49
            v_lshlrev_b32 v49, 1, v49
            s_mul_i32 s{S_T0}, s{S_WAVE}, 3
            s_cmp_ge_u32 s{S_WAVE}, 2
            s_cselect_b32 s{S_T1}, 186, 0
            s_add_u32 s{S_T0}, s{S_T0}, s{S_T1}
            v_add_u32 v48, s{S_T0}, v48
            v_mov_b32 v51, {100096 - 112 * 192}
            v_mov_b32 v52, 71680
        """)
        for cl in range(3):
            for ks in range(2):
                for jh in range(2):
                    t = 53 + 2 * jh
                    s(f"""
                        v_add_u32 v{t}, {cl + 6 * (16 * ks + 8 * jh)}, v48
                        v_cmp_gt_u32 vcc, 112, v{t}
                        v_mul_u32_u24 v{t}, 192, v{t}
                        v_add_u32 v{t}, v{t}, v49
                        v_cndmask_b32 v{t+1}, v51, v52, vcc
                        v_add_u32 v{t}, v{t}, v{t+1}
                    """)
                    for blk in range(3):
                        f = (cl * 2 + ks) * 3 + blk
                        s(f"ds_read_b64_tr_b16 {v(W2R + 4*f + 2*jh, 2)}, v{t} offset:{64 * blk}")
        s(f"""
            s_mul_i32 s{S_T0}, s{S_WAVE}, 192
            v_lshlrev_b32 v50, 3, v47
            v_add_u32 v50, s{S_T0}, v50
            v_add_u32 v51, {SUMS}, v50
            v_add_u32 v50, {BVEC}, v50
            v_and_b32 v53, 31, v46
            v_mul_u32_u24 v54, 192, v53
            v_lshl_add_u32 v{V_CA}, v47, 5, v54
            v_lshl_add_u32 v{V_CB}, v47, 4, v54
        """)
        for cl in range(3):
            for ks in range(2):
                for jh in range(2):
                    s(f"ds_read_b64 {v(BS + 4*(cl*2+ks) + 2*jh, 2)}, v50 offset:{2 * (32*cl + 16*ks + 8*jh)}")
        s(f"""
            s_waitcnt vmcnt(0)
            s_barrier
            s_cmp_lg_u32 s{S_WAVE}, 0
            s_cbranch_scc1 L_arrived
            v_lshlrev_b32 v54, 7, v{V_LANE16}
            s_lshl_b32 s{S_T0}, s{S_SHARD}, 8
            s_add_u32 s{S_T0}, s{S_T0}, 0x10000
            v_mov_b32 v55, 1
            s_mov_b64 exec, 0xff
            buffer_atomic_add v55, v54, {srd(S_WS)}, s{S_T0} offen
            s_mov_b64 exec, -1
            L_arrived:
        """)
        self.stamp()
        for blk in range(3):
            for g in range(6):
                s(f"v_mfma_f32_32x32x16_bf16 {v(ACC,16)}, {v(BS + 4*g,4)}, {v(W2R + 4*(3*g+blk),4)}, {'0' if g == 0 else v(ACC,16)}")
            s(f"v_mov_b32 v{56 + blk}, v{ACC}")
        s(f"""
            v_lshlrev_b32 v52, 2, v53
            v_add_u32 v52, {BIASV}, v52
            s_mov_b32 exec_hi, 0
            ds_add_f32 v52, v56
            ds_add_f32 v52, v57 offset:128
            ds_add_f32 v52, v58 offset:256
            s_mov_b64 exec, -1
        """)
        for r in range(72):
            s(f"""
                v_lshlrev_b32 v{54 + 2*(r&1)}, 16, v{W2R + r}
                v_and_b32 v{55 + 2*(r&1)}, 0xffff0000, v{W2R + r}
                v_cvt_pk_f16_f32 v{W2R + r}, v{54 + 2*(r&1)}, v{55 + 2*(r&1)}
            """)
        s(f"""
            v_bfe_u32 v54, v53, 2, 1
            v_lshrrev_b32 v55, 3, v53
            v_cmp_eq_u32 vcc, v54, v47
            v_mov_b32 v54, 7
            v_cndmask_b32 v55, v54, v55, vcc
            v_mov_b32 v56, 0x3f80
        """)
        for g in range(4):
            s(f"""
                v_cmp_eq_u32 vcc, {g}, v55
                v_cndmask_b32 v57, 0, v56, vcc
                v_accvgpr_write_b32 a{A_ID + g}, v57
            """)
        s(f"""
            v_mov_b32 v56, 0x3f803f80
            v_cmp_eq_u32 vcc, 0, v47
            v_cndmask_b32 v57, 0, v56, vcc
            v_accvgpr_write_b32 a{A_ONES}, v57
            v_accvgpr_write_b32 a{A_ONES+1}, 0
            v_accvgpr_write_b32 a{A_ONES+2}, 0
            v_accvgpr_write_b32 a{A_ONES+3}, 0
        """)
        s(f"""
            s_cmp_lg_u32 s{S_WAVE}, 0
            s_cbranch_scc1 L_released
            s_lshr_b32 s{S_T0}, s2, 3
            s_and_b32 s{S_T0}, s{S_T0}, 7
            s_lshl_b32 s{S_T0}, s{S_T0}, 11
            s_add_u32 s{S_T0}, s{S_T0}, 0x10000
            v_and_b32 v54, 7, v46
            v_lshlrev_b32 v54, 8, v54
            s_mov_b32 s{S_CNT}, 0
            L_poll:
            buffer_load_dword v55, v54, {srd(S_WS)}, s{S_T0} offen sc1
            s_add_u32 s{S_CNT}, s{S_CNT}, 1
            s_waitcnt vmcnt(0)
            v_cmp_gt_u32 vcc, 32, v55
            s_cmp_gt_u32 s{S_CNT}, 0x40000
            s_cbranch_scc1 L_released
            s_cbranch_vccnz L_poll
            L_released:
            s_waitcnt vmcnt(0) lgkmcnt(0)
            s_barrier
        """)
        self.stamp()
        T = ACC
        s(f"""
            v_min_u32 v53, 47, v46
            v_lshlrev_b32 v53, 3, v53
            s_mul_i32 s{S_T0}, s{S_WAVE}, 384
            v_add_u32 v53, s{S_T0}, v53
        """)
        for j in range(8):
            if j % 2 == 0: s(f"s_movk_i32 s{S_T1}, {2048 * j}")
            s(f"buffer_load_dwordx2 {v(T + 2*j, 2)}, v53, {srd(S_WS)}, s{S_T1} offen offset:{2048 * (j & 1)} sc1")
        for n in range(2):
            for o in self.x_loads(n): self.em.emit(o)
        for k in range(12, 12 + c.hpre):
            for o in self.h_loads(k): self.em.emit(o)
        for blk in range(3): s(f"ds_read_b32 v{56 + blk}, v52 offset:{128 * blk}")
        for blk in range(3):
            s(f"""
                v_cvt_pk_bf16_f32 v59, v{56 + blk}, v{56 + blk}
                v_lshlrev_b32 v59, 16, v59
                v_sub_f32 v59, v{56 + blk}, v59
                v_cvt_pk_bf16_f32 v59, v{56 + blk}, v59
                v_accvgpr_write_b32 a{A_BIAS + 2*blk}, v59
                v_accvgpr_write_b32 a{A_BIAS + 2*blk + 1}, 0
            """)
        for j in range(1, 8): s(f"v_pk_add_f32 {v(T,2)}, {v(T,2)}, {v(T + 2*j, 2)}")
        s(f"""
            v_mov_b32 v56, {f32(1e-6)}
            v_fmac_f32 v56, {f32(1 / (CS * CS))}, v{T}
            v_mov_b32 v57, {f32(1e-6)}
            v_fmac_f32 v57, {f32(1 / (CS * CS))}, v{T+1}
            v_sqrt_f32 v56, v56
            v_sqrt_f32 v57, v57
            v_cmp_gt_u32 vcc, 48, v46
            v_add_f32 v58, v56, v57
            v_cndmask_b32 v58, 0, v58, vcc
            v_add_f32_dpp v58, v58, v58 row_shr:1 row_mask:0xf bank_mask:0xf bound_ctrl:1
            v_add_f32_dpp v58, v58, v58 row_shr:2 row_mask:0xf bank_mask:0xf bound_ctrl:1
            v_add_f32_dpp v58, v58, v58 row_shr:4 row_mask:0xf bank_mask:0xf bound_ctrl:1
            v_add_f32_dpp v58, v58, v58 row_shr:8 row_mask:0xf bank_mask:0xf bound_ctrl:1
            s_nop 1
            v_readlane_b32 s{S_T0}, v58, 15
            v_readlane_b32 s{S_T1}, v58, 31
            v_readlane_b32 s{S_T2}, v58, 47
            v_mov_b32 v58, s{S_T0}
            v_add_f32 v58, s{S_T1}, v58
            v_add_f32 v58, s{S_T2}, v58
            s_lshl_b32 s{S_T0}, s{S_WAVE}, 2
            s_add_u32 s{S_T0}, s{S_T0}, {MEANP}
            v_mov_b32 v59, s{S_T0}
            v_mov_b32 v60, {MEANP}
            ds_write_b32 v59, v58
            s_waitcnt lgkmcnt(0)
            s_barrier
            ds_read_b128 {v(T,4)}, v60
            v_min_u32 v53, 47, v46
            v_lshlrev_b32 v53, 2, v53
            s_mul_i32 s{S_T0}, s{S_WAVE}, 192
            s_add_u32 s{S_T0}, s{S_T0}, {SUMS}
            v_add_u32 v53, s{S_T0}, v53
            v_mul_f32 v56, v56, v{V_G}
            v_mul_f32 v57, v57, v{V_G+1}
            v_add_f32 v{T}, v{T}, v{T+1}
            v_add_f32 v{T+2}, v{T+2}, v{T+3}
            v_add_f32 v{T}, v{T}, v{T+2}
            v_mov_b32 v58, {f32(1e-6)}
            v_fmac_f32 v58, {f32(1 / 384)}, v{T}
            v_rcp_f32 v58, v58
            s_mul_i32 s{S_T0}, s{S_WAVE}, 18
            v_fma_f32 v56, v56, v58, 1.0
            v_fma_f32 v57, v57, v58, 1.0
            v_mul_f32 v56, {f32(1 / CS)}, v56
            v_mul_f32 v57, {f32(1 / CS)}, v57
            v_cvt_pk_f16_f32 v56, v56, v57
            ds_write_b32 v53, v56
            s_add_u32 s{S_T0}, s{S_T0}, 70
            s_lshl_b32 s{S_T0}, s{S_T0}, 10
            v_add_u32 v54, s{S_T0}, v{V_LANE16}
            s_cmp_ge_u32 s{S_WAVE}, 1
            s_cselect_b32 s{S_T1}, {100096 - 21 * 1024 - 71680}, 0
            v_add_u32 v55, s{S_T1}, v54
            s_cmp_ge_u32 s{S_WAVE}, 2
            s_cselect_b32 s{S_T1}, {100096 - 21 * 1024 - 71680}, 0
            v_add_u32 v54, s{S_T1}, v54
            s_waitcnt lgkmcnt(0)
        """)
        for cl in range(3):
            for ks in range(2):
                for jh in range(2):
                    s(f"ds_read_b64 {v(BS + 4*(cl*2+ks) + 2*jh, 2)}, v51 offset:{2 * (32*cl + 16*ks + 8*jh)}")
        for f in range(18):
            for t in range(4):
                s(f"v_pk_mul_f16 v{W2R + 4*f + t}, v{W2R + 4*f + t}, v{BS + 4*(f//3) + t}")
            if f: s(f"ds_write_b128 v{54 if f - 1 < 3 else 55}, {v(W2R + 4*(f-1), 4)} offset:{1024 * (f - 1)}")
        s(f"ds_write_b128 v55, {v(W2R + 4*17, 4)} offset:{1024 * 17}")
        s(f"s_xor_b32 s{S_UNSC}, s{S_UNSC}, 0x80000000\ns_waitcnt lgkmcnt(0)\ns_barrier")
        self.stamp()

    def phase2(self):
        c = self.cfg
        POOL, YL, ACC2, STAGE = [8, 24], [40, 48], 62, 160
        nc = c.cmix
        O = lambda l, st: [Op(x, stream=st) for x in l]
        cnt = dict(w1=0, w2=0)
        W1B = lambda k: [A_W + 4 * i for i in range(5)] + ([72, 76, 80] if k >= 14 else [])
        W2B = lambda k: [A_W + 20 + 4 * i for i in range(7)] + ([84, 88, 92] if k >= 14 else [])
        pend = []
        ops = []
        def nextbuf(key, l):
            cnt[key] = (cnt[key] + 1) % len(l); return l[cnt[key]]
        def g1(k):
            p, ch = 3 - k // 12, k % 12; r = []
            acc = POOL[k % 2]
            for ks in range(6):
                op, f = self.w_read(w1_addr(6 * ch + ks), nextbuf("w1", W1B(k)), "D1"); r.append(op)
                r.append(Op(f"v_mfma_f32_32x32x16_bf16 {v(acc,16)}, {a(f,4)}, {a(A_LN(p, 0) + 4*ks,4)}, {'0' if ks == 0 else v(acc,16)}", stream="M"))
            n = 16 - 2 * nc
            ad, ga = self.table_ops(acc, n, lambda i: "ds_read_u16_d16_hi" if i & 1 else "ds_read_u16")
            r += ad + ga
            if nc:
                r += O([f"v_mul_f32 v{acc+i}, s{S_UNSC}, v{acc+i}" for i in range(n, 16)], "VN")
                for part in self.chain(acc + n, YL[k % 2] + 8 - nc, 56, 59, nc): r += O(part, "VN")
            return r
        f2 = {}
        def g2(k, t):
            pi, ch = divmod(k, 12); p = 3 - pi; r = []
            base = ACC2 + 48 * t
            if t == 0:
                acc, y = POOL[k % 2], YL[k % 2]
                r += O([f"v_or_b32 v{y+i}, v{acc+2*i}, v{acc+2*i+1}" for i in range(8 - nc)], "VO")
                B = lambda ks: v(y + 4 * ks, 4)
            elif pi == 0: B = lambda ks: v(V_Y + 8 * ch + 4 * ks, 4)
            else: B = lambda ks: a(A_H + 8 * ((k - 12) % 10) + 4 * ks, 4)
            if ch == 0:
                for blk in range(3):
                    r.append(Op(f"v_mfma_f32_32x32x16_bf16 {v(base + 16*blk,16)}, {a(A_BIAS + 2*blk,4)}, {a(A_ONES,4)}, 0", stream="M"))
            for ks in range(2):
                for blk in range(3):
                    if t == 1:
                        op, f2[(ks, blk)] = self.w_read(w2_addr((ch * 2 + ks) * 3 + blk), nextbuf("w2", W2B(k)), "D2"); r.append(op)
                    acc2 = v(base + 16 * blk, 16)
                    r.append(Op(f"v_mfma_f32_32x32x16_f16 {acc2}, {a(f2[(ks, blk)],4)}, {B(ks)}, {acc2}", stream="M"))
            first = next(o for o in r if o.kind == "m")
            first.tw.add(("pace", k, t))
            if t == 1:
                kk = k + c.hahead if k + c.hahead >= 12 + c.hpre else None
                if kk is not None and kk < 48:
                    l = self.h_loads(kk); l[0].tr.add(("pace", k, t)); r += l
            if ch % 4 == 1 + t:
                n = 6 * pi + 2 * (ch // 4) + t
                r.append(Op(f"v_smfmac_f32_32x32x32_bf16 {v(base + 16*(ch//4),16)}, {a(A_ID,4)}, {a(A_X + 8 * (n % 2),8)}, v{V_IDX}", stream="M"))
                if n + 2 < 24: r += self.x_loads(n + 2)
            if pend and (t == 0 and ch < 11 or (ch, t) == (1, 1)):
                o = pend.pop(0); o.tr.add(("pace", k, t)); r.append(o)
            if ch == 11:
                assert len(pend) == (0 if t == 1 or pi == 3 else 6)
                dst = STAGE + 24 * t
                for j in range(24):
                    r.append(Op(f"v_cvt_pk_bf16_f32 v{dst + j}, v{base + 2*j}, v{base + 2*j + 1}", stream="VE"))
                    if j % 4 == 3:
                        o = Op(f"buffer_store_dwordx4 {v(dst + j - 3, 4)}, v{V_CB}, {srd(S_OUT)}, s{S_ROW + 2*p + t} offen offset:{8 * (j - 3)} {c.opol}", stream="DS")
                        (r if pi == 3 else pend).append(o)
            return r
        ops += g1(0) + g1(1)
        for k in range(48):
            ops += g2(k, 1) + g2(k, 0)
            if k + 2 < 48: ops += g1(k + 2)
        self.run(ops, ["M"], ["VO", "VE", "VN"], ["D1", "D2", "DG", "DH", "DS", "DX"], [], "phase2", c.gap2)

    def dump_ln(self):
        s = self.seq
        s(f"""
            s_lshl_b32 s{S_T0}, s2, 2
            s_add_u32 s{S_T0}, s{S_T0}, s{S_WAVE}
            s_mul_i32 s{S_T0}, s{S_T0}, {192 * 256}
            s_add_u32 s{S_T0}, s{S_T0}, 0x100000
            v_lshrrev_b32 v46, 2, v{V_LANE16}
        """)
        for r in range(192):
            s(f"buffer_store_dword a{r}, v46, {srd(S_WS)}, s{S_T0} offen offset:{(r % 16) * 256}")
            if r % 16 == 15: s(f"s_add_u32 s{S_T0}, s{S_T0}, 4096\ns_waitcnt vmcnt(0)")

    def dump_stamps(self):
        s = self.seq
        s(f"""
            s_lshl_b32 s{S_T0}, s2, 2
            s_add_u32 s{S_T0}, s{S_T0}, s{S_WAVE}
            s_lshl_b32 s{S_T0}, s{S_T0}, 8
            s_add_u32 s{S_T0}, s{S_T0}, 0x20000
            v_lshrrev_b32 v46, 2, v{V_LANE16}
            buffer_store_dword v{V_STAMP}, v46, {srd(S_WS)}, s{S_T0} offen
        """)

    def build(self):
        c = self.cfg
        self.prologue()
        self.phase1()
        self.switch()
        self.phase2()
        if c.stamps:
            self.stamp()
            self.seq("s_waitcnt vmcnt(0)")
            self.stamp()
            self.dump_stamps()
        self.seq("L_last:\ns_endpgm")
        seq, t = self.em.out, self.em.mach.t
        if c.loop2:
            idx = [i for i, o in enumerate(seq) if o.mn == "v_mfma_f32_32x32x16_bf16" and o.stream == "M1"]
            idx = idx[len(idx) // 2:]
            i1, i2 = idx[144], idx[288]
            self.nstamp -= 2
            self.em = Emitter(); self.stamp(); pre = self.em.out
            self.em = Emitter()
            self.stamp(); self.seq("s_waitcnt vmcnt(0)"); self.stamp(); self.dump_stamps(); self.seq("L_last:\ns_endpgm")
            pre += [Op(f"s_mov_b32 s{S_CNT}, 4")]
            while sum(o.nbytes for o in pre) % 32: pre.append(Op("s_nop 0"))
            post = [Op(f"s_sub_u32 s{S_CNT}, s{S_CNT}, 1"), Op(f"s_cmp_lg_u32 s{S_CNT}, 0"), Op("s_cbranch_scc1 L_loop2"), Op("s_nop 15")]
            seq = seq[:i1] + pre + [Op("L_loop2:")] + seq[i1:i2] + post + self.em.out
        nb = sum(o.nbytes for o in seq)
        print(f"; total {len(seq)} instrs, {nb} bytes, model {t} cycles, waits {sum(o.kind == 'wait' for o in seq)}, nops {sum(o.cost // 4 for o in seq if o.kind == 'nop')}", file=sys.stderr)
        return seq, nb


HEADER = open("standalone__modern_conv_block_slak__vision.s.ref").read().split("; Override launch")[0]


def main():
    ap = argparse.ArgumentParser()
    ap.add_argument("-o", default="standalone__modern_conv_block_slak__vision.s")
    ap.add_argument("--cmix", type=int, default=2)
    ap.add_argument("--hpre", type=int, default=0)
    ap.add_argument("--hahead", type=int, default=10)
    ap.add_argument("--upace", type=lambda s: [int(x) for x in s.split(",")], default=[1, 4, 7])
    ap.add_argument("--hpol", default="")
    ap.add_argument("--hpol2", default="")
    ap.add_argument("--nosched", action="store_true")
    ap.add_argument("--trace", action="store_true")
    ap.add_argument("--abl", default="")
    ap.add_argument("--fine", type=int, default=0)
    ap.add_argument("--loop2", action="store_true")
    ap.add_argument("--ldslat", type=int, default=110)
    ap.add_argument("--mlat", type=int, default=56)
    ap.add_argument("--cover", type=int, default=0)
    ap.add_argument("--preread", default="")
    ap.add_argument("--jit", type=int, default=16384)
    ap.add_argument("--pf0", type=int, default=4)
    ap.add_argument("--dump", action="store_true")
    ap.add_argument("--stamps", action="store_true")
    ap.add_argument("--noprefetch", dest="prefetch", action="store_false")
    ap.add_argument("--xpol", default="")
    ap.add_argument("--xpol2", default="")
    ap.add_argument("--opol", default="")
    ap.add_argument("--gap1", type=int, default=40)
    ap.add_argument("--gap2", type=int, default=32)
    ap.add_argument("--ad_lead", type=int, default=6)
    ap.add_argument("--dlimit", type=int, default=3)
    ap.add_argument("--dma_lat", type=int, default=3500)
    ap.add_argument("--x_lat", type=int, default=2500)
    cfg = ap.parse_args()
    cfg.ws_bytes = WS_BYTES
    import asmlib
    asmlib.Machine.LDS_LAT = cfg.ldslat; asmlib.Machine.MLAT = cfg.mlat
    g = Gen(cfg)
    seq, nb = g.build()
    body = "\n".join(o.text for o in seq).replace("CODE_BYTES", str(nb - 0))
    txt = HEADER + f"""; @launch grid=(256,1,1) block=(256,1,1) lds={LDS_TOTAL}
.amdgcn_target "amdgcn-amd-amdhsa--gfx950"
.text
.globl {NAME}
.p2align 8
.type {NAME},@function
{NAME}:
{body}
.section .rodata,"a"
.p2align 6
.amdhsa_kernel {NAME}
  .amdhsa_next_free_vgpr 512
  .amdhsa_next_free_sgpr 102
  .amdhsa_accum_offset 256
  .amdhsa_group_segment_fixed_size 0
  .amdhsa_kernarg_size 72
  .amdhsa_user_sgpr_count 2
  .amdhsa_user_sgpr_kernarg_segment_ptr 1
  .amdhsa_system_sgpr_workgroup_id_x 1
  .amdhsa_float_denorm_mode_32 3
.end_amdhsa_kernel
"""
    open(cfg.o, "w").write(txt)


if __name__ == "__main__":
    main()
```

```python
import math, struct, sys, argparse
from asmlib import Op, Emitter, schedule

NAME = "standalone__modern_conv_block_slak__vision_kernel"

K0 = -2.0 * math.sqrt(2.0 / math.pi) * math.log2(math.e)
K1 = K0 * 0.044715
CS = -(abs(K1) ** (1.0 / 3.0))
KK = K0 / CS


def f32(x): return "0x%08x" % struct.unpack("<I", struct.pack("<f", x))[0]
def f16bits(x): return struct.unpack("<H", struct.pack("<e", x))[0]


LDS_TOTAL = 163840
STG = [71680, 100096, 121856]
ROWB = 2176
CONVA = 143616
TP = 93952
TN = TP + 65536
TP_DW, TN_DW = 1536, 1088
SPARE = 93440
BVEC = 93184
SUMS = 155392
BIASV = SUMS + 1536
MEANP = BIASV + 384
assert MEANP + 16 <= 157440 and TN + TN_DW * 4 == LDS_TOTAL


def w1_addr(f): return f * 1024 if f < 70 else 157440 + (f - 70) * 1024
def w2_addr(f): return 71680 + f * 1024 if f < 21 else 100096 + (f - 21) * 1024
def raw2_addr(row): return 71680 + row * 192 if row < 112 else 100096 + (row - 112) * 192


S_X, S_OUT, S_WS, S_W1, S_W2, S_DW, S_G, S_B, S_DBG, S_CODE = 4, 8, 12, 16, 20, 24, 28, 32, 36, 40
S_KA = 44
S_WAVE, S_Y0, S_X0, S_T0, S_T1, S_T2, S_T3 = 62, 63, 64, 65, 66, 67, 68
S_M0 = 70
S_ROW = 76
S_K16, S_TBASE, S_SCALE, S_UNSC, S_DELTA, S_64, S_128, S_SHARD = 84, 85, 86, 87, 88, 89, 90, 91
S_SAVE = 92
S_ST = 94
S_MUL4 = 96
S_CNT = 97
S_W2M = 69
S_PF = 100
S_H, S_HT = 3, 101
S_RET = 98
S_MODE = 92


def srd(b): return f"s[{b}:{b+3}]"
def v(n, k=1): return f"v{n}" if k == 1 else f"v[{n}:{n+k-1}]"
def a(n, k=1): return f"a{n}" if k == 1 else f"a[{n}:{n+k-1}]"


V_TID = 0
V_LANE16 = 1
V_FB1 = 2
V_FB2 = 3
V_IDX = 4
V_CA = 5
V_CB = 6
V_DMA = 12
V_G = 18
V_BB = 20
V_FLAG = 21
V_SQ = 22
V_LN = 46
V_E = 62
V_B = 70
V_A = 86
V_POOL = 102
V_PF = 158
V_STAMP = 159
V_Y = 160


def A_LN(p, t): return 24 * p if t == 0 else 96 + 24 * (p & 1)


A_CVB = 72
A_CVA = 144
A_TI = 156
A_ZERO = 164
A_W = 192
A_H = 96
A_X = 176
A_BIAS = 240
A_ONES = 246
A_ID = 250
A_PFD = 255
HOFF = 0x200000
WS_BYTES = HOFF + 1024 * 3 * 24576


class Gen:
    def __init__(self, cfg):
        self.cfg = cfg
        self.em = Emitter(cfg.cover)
        self.nstamp = 0

    def seq(self, lines):
        for l in lines.strip().split("\n"):
            l = l.split(";")[0].strip()
            if l:
                self.em.emit(Op(l))

    def stamp(self):
        if not self.cfg.stamps: return
        i = self.nstamp; self.nstamp += 1
        self.seq(f"""
            s_memtime s[{S_ST}:{S_ST+1}]
            s_waitcnt lgkmcnt(0)
            v_writelane_b32 v{V_STAMP}, s{S_ST}, {i}
            s_memrealtime s[{S_ST}:{S_ST+1}]
            s_waitcnt lgkmcnt(0)
            v_writelane_b32 v{V_STAMP}, s{S_ST}, {32 + i}
        """)

    def code_prefetch(self):
        self.em.emit(Op(f"s_mov_b32 s{S_PF}, {self.pf_next}"))
        o = Op(f"buffer_load_dword a{A_PFD}, v{V_PF}, {srd(S_CODE)}, s{S_PF} offen", lat=1500); o.defs = []
        self.em.emit(o)
        self.pf_next += 8192

    def frag_base(self, addr):
        b = addr >> 16
        return (V_LANE16, V_FB1, V_FB2)[b], addr & 0xffff

    def table_routine(self):
        s = self.seq
        s("L_tab:")
        for k in range(11):
            neg = k >= 6
            i0 = 256 * k - (TP_DW if neg else 0)
            sg = "" if neg else "-"
            s(f"v_add_u32 v50, {i0}, v0" if i0 else "v_mov_b32 v50, v0")
            if k == 10: s(f"v_min_u32 v50, {TN_DW - 1}, v50")
            s(f"""
                v_lshl_or_b32 v52, v50, 17, v46
                v_add_u32 v53, 0x10000, v52
                v_mul_f32_e64 v52, {sg}v52, s{S_UNSC}
                v_mul_f32_e64 v53, {sg}v53, s{S_UNSC}
                v_fma_f32 v54, v52, v52, v47
                v_fma_f32 v55, v53, v53, v47
                v_mul_f32 v54, v52, v54
                v_mul_f32 v55, v53, v55
                v_exp_f32 v54, v54
                v_exp_f32 v55, v55
                v_lshlrev_b32 v50, 2, v50
                v_add_f32 v54, 1.0, v54
                v_add_f32 v55, 1.0, v55
                v_rcp_f32 v54, v54
                v_rcp_f32 v55, v55
                v_add_u32 v50, {TN if neg else TP}, v50
                v_mul_f32 v52, v52, v54
                v_mul_f32 v53, v53, v55
                v_cvt_pk_f16_f32 v54, v52, v53
                v_mul_f32 v52, v52, v52
                v_mul_f32 v53, v53, v53
                v_cvt_pk_bf16_f32 v52, v52, v53
                v_cndmask_b32 v{56 + (k & 1)}, v52, v54, s[{S_MODE}:{S_MODE+1}]
                ds_write_b32 v50, v{56 + (k & 1)}
            """)
        s(f"s_waitcnt lgkmcnt(0)\ns_setpc_b64 s[{S_RET}:{S_RET+1}]")

    def call_table(self):
        self.seq(f"""
            v_mov_b32 v46, 0x8000
            v_mov_b32 v47, {f32(KK)}
            s_waitcnt lgkmcnt(0)
            s_call_b64 s[{S_RET}:{S_RET+1}], L_tab
        """)
        self.em.mach.t += 1400

    def mk_srd(self, base, ka, size):
        self.seq(f"""
            s_mov_b32 s{base}, s{S_KA+2*ka}
            s_and_b32 s{base+1}, s{S_KA+2*ka+1}, 0xffff
            s_mov_b32 s{base+2}, {size}
            s_mov_b32 s{base+3}, 0x20000
        """)

    def prologue(self):
        c = self.cfg
        s = self.seq
        s(f"""
            s_cmp_ge_u32 s2, 0x100
            s_cbranch_scc0 L_go
            s_endpgm
        """)
        self.table_routine()
        s("L_redo:")
        self.call_table()
        s("s_barrier\ns_branch L_back")
        while self.em.mach.addr % 64: s("s_nop 0")
        self.em.mach.t = 0
        s(f"""
            L_go:
            s_load_dwordx16 s[{S_KA}:{S_KA+15}], s[0:1], 0
            s_load_dwordx2 s[{S_KA+16}:{S_KA+17}], s[0:1], 64
            s_getpc_b64 s[{S_CODE}:{S_CODE+1}]
            L_pc:
        """)
        self.pc_addr = self.em.mach.addr
        s(f"""
            s_sub_u32 s{S_CODE}, s{S_CODE}, {self.pc_addr}
            s_subb_u32 s{S_CODE+1}, s{S_CODE+1}, 0
            s_and_b32 s{S_CODE+1}, s{S_CODE+1}, 0xffff
            s_mov_b32 s{S_CODE+2}, L_last-{NAME}
            s_mov_b32 s{S_CODE+3}, 0x20000
            v_and_b32 v47, 63, v0
            v_lshlrev_b32 v{V_PF}, 7, v47
        """)
        self.pc_addr = 0
        self.pf_next = 0
        if c.prefetch:
            for _ in range(c.pf0): self.code_prefetch()
        s(f"""
            v_lshrrev_b32 v46, 6, v0
            v_lshlrev_b32 v{V_LANE16}, 4, v47
            v_readfirstlane_b32 s{S_WAVE}, v46
            s_and_b32 s{S_SHARD}, s2, 7
            s_lshr_b32 s{S_T0}, s2, 3
            s_lshr_b32 s{S_T1}, s{S_T0}, 4
            s_lshl_b32 s{S_Y0}, s{S_SHARD}, 1
            s_add_u32 s{S_Y0}, s{S_Y0}, s{S_T1}
            s_lshl_b32 s{S_Y0}, s{S_Y0}, 5
            s_and_b32 s{S_X0}, s{S_T0}, 15
            s_lshl_b32 s{S_X0}, s{S_X0}, 5
            v_and_b32 v48, 31, v47
            v_lshrrev_b32 v49, 5, v47
            s_lshl_b32 s{S_T2}, s{S_Y0}, 9
            s_add_u32 s{S_T2}, s{S_T2}, s{S_X0}
            s_sub_u32 s{S_T2}, s{S_T2}, 513
            s_mul_i32 s{S_T2}, s{S_T2}, 0xc0
            s_sub_u32 s{S_T1}, s{S_X0}, 1
            v_mov_b32 v55, 0x80000000
            s_lshl_b32 s{S_T3}, s{S_WAVE}, 6
        """)
        if c.stamps: s(f"v_mov_b32 v{V_STAMP}, 0")
        self.stamp()
        for k in range(6):
            s(f"s_add_u32 s{S_T0}, s{S_T3}, {256 * k}")
            if k == 5: s(f"s_min_u32 s{S_T0}, s{S_T0}, 1296")
            s(f"""
                v_add_u32 v50, s{S_T0}, v47
                s_lshl_b32 s{S_M0+k}, s{S_T0}, 4
                v_mul_u32_u24 v51, 482, v50
                v_lshrrev_b32 v51, 16, v51
                v_mul_u32_u24 v52, 136, v51
                v_sub_u32 v52, v50, v52
                v_lshrrev_b32 v53, 2, v52
                v_lshrrev_b32 v54, 4, v52
                v_xor_b32 v52, v52, v54
                v_and_b32 v52, 3, v52
                v_lshl_add_u32 v51, v51, 9, v53
                v_add_u32 v53, s{S_T1}, v53
                v_mul_u32_u24 v51, 0xc0, v51
                v_cmp_gt_u32 vcc, 0x200, v53
                v_lshl_add_u32 v51, v52, 4, v51
                v_add_u32 v51, s{S_T2}, v51
                v_cndmask_b32 v{V_DMA+k}, v55, v51, vcc
            """)
        for k in range(4):
            s(f"""
                v_lshrrev_b32 v51, 5, v0
                v_add_u32 v51, {8 * k}, v51
                v_mul_u32_u24 v52, 57, v51
                v_lshrrev_b32 v52, 9, v52
                v_mul_u32_u24 v53, 9, v52
                v_sub_u32 v53, v51, v53
                v_mul_u32_u24 v53, 96, v53
                v_lshl_add_u32 v53, v52, 5, v53
                v_add_lshl_u32 v{22 + k}, v53, v48, 1
            """)
        s(f"""
            v_mul_u32_u24 v50, 12, v48
            v_mul_u32_u24 v51, 3072, v49
            v_add_u32 v50, v50, v51
            s_mov_b32 s{S_64}, 64
            s_movk_i32 s{S_128}, 0x80
            s_waitcnt lgkmcnt(0)
        """)
        self.mk_srd(S_X, 0, 50331648)
        for op in self.dma_ops(0, None): self.em.emit(op)
        self.mk_srd(S_DW, 1, 1728)
        for k in range(4): s(f"buffer_load_ushort v{22 + k}, v{22 + k}, {srd(S_DW)}, 0 offen")
        self.mk_srd(S_W1, 2, 73728)
        for i in range(3):
            s(f"""
                s_mul_i32 s{S_T0}, s{S_WAVE}, 3
                s_add_u32 s{S_T0}, s{S_T0}, {i}
                s_lshr_b32 s{S_T1}, s{S_T0}, 1
                s_and_b32 s{S_T0}, s{S_T0}, 1
                s_mul_i32 s{S_T2}, s{S_T0}, 36
                s_add_u32 s{S_T2}, s{S_T2}, s{S_T1}
                s_mul_i32 s{S_T1}, s{S_T1}, {16 * 768}
                s_mul_i32 s{S_T0}, s{S_T0}, 384
                s_add_u32 s{S_T0}, s{S_T0}, s{S_T1}
                s_add_u32 s{S_T1}, s{S_T0}, {8 * 768}
            """)
            for j in range(8):
                s(f"buffer_load_dwordx3 {v(62 + 32 * i + 4 * j, 3)}, v50, {srd(S_W1)}, s{S_T0 if j < 4 else S_T1} offen offset:{(j & 3) * 768}")
            s(f"""
                s_cmp_ge_u32 s{S_T2}, 40
                s_cselect_b32 s{S_T3}, {157440 - 70 * 1024}, 0
                s_lshl_b32 s{S_T2}, s{S_T2}, 10
                v_add_u32 v{32 + 2 * i}, s{S_T2}, v{V_LANE16}
                v_add_u32 v{33 + 2 * i}, s{S_T3}, v{32 + 2 * i}
            """)
        for q in (1, 2):
            for op in self.dma_ops(q, None): self.em.emit(op)
        for base, ka, size in ((S_W2, 3, 73728), (S_G, 4, 768), (S_B, 5, 768), (S_OUT, 6, 50331648), (S_DBG, 7, 256), (S_WS, 8, c.ws_bytes)):
            self.mk_srd(base, ka, size)
        s(f"""
            v_min_u32 v50, 47, v47
            s_mul_i32 s{S_T0}, s{S_WAVE}, 96
            v_lshl_add_u32 v50, v50, 1, s{S_T0}
            v_and_b32 v52, 31, v50
            v_lshrrev_b32 v51, 5, v50
            v_mad_u32_u24 v52, v52, 6, v51
            s_cmp_ge_u32 s{S_WAVE}, 2
            s_cselect_b32 s{S_T0}, 186, 0
            v_add_lshl_u32 v52, v52, s{S_T0}, 1
            buffer_load_ushort v{V_G}, v52, {srd(S_G)}, 0 offen
            buffer_load_ushort v{V_G+1}, v52, {srd(S_G)}, 0 offen offset:12
            buffer_load_ushort v{V_BB}, v52, {srd(S_B)}, 0 offen
            buffer_load_ushort v{V_FLAG}, v52, {srd(S_B)}, 0 offen offset:12
        """)
        s(f"""
            s_cmp_ge_u32 s2, 8
            s_cbranch_scc1 L_noinit
            s_cmp_lg_u32 s{S_WAVE}, 3
            s_cbranch_scc1 L_noinit
            v_mov_b32 v52, 0
            v_mov_b32 v53, 0
            v_mov_b32 v54, 0
            v_mov_b32 v55, 0
            s_lshl_b32 s{S_T0}, s2, 11
            s_lshl_b32 s{S_T1}, s2, 8
            s_add_u32 s{S_T1}, s{S_T1}, 0x10000
            v_and_b32 v50, 7, v47
            v_lshlrev_b32 v50, 11, v50
            buffer_store_dwordx4 v[52:55], v{V_LANE16}, {srd(S_WS)}, s{S_T0} offen sc1
            buffer_store_dwordx4 v[52:55], v{V_LANE16}, {srd(S_WS)}, s{S_T0} offen offset:1024 sc1
            buffer_store_dword v52, v50, {srd(S_WS)}, s{S_T1} offen sc1
            s_waitcnt vmcnt(0)
            v_mov_b32 v52, 1
            v_mov_b32 v53, 0
            s_mov_b64 exec, 1
            buffer_atomic_add v52, v53, {srd(S_DBG)}, 0 offen
            s_mov_b64 exec, -1
            L_noinit:
        """)
        s(f"""
            v_add_u32 v{V_FB1}, 0x10000, v{V_LANE16}
            v_add_u32 v{V_FB2}, 0x20000, v{V_LANE16}
            s_mov_b32 s{S_K16}, 0x{f16bits(KK):04x}{f16bits(KK):04x}
            s_mov_b32 s{S_TBASE}, {TP}
            s_mov_b32 s{S_UNSC}, {f32(2.0 ** 112)}
            s_mov_b64 s[{S_MODE}:{S_MODE+1}], 0
            v_and_b32 v50, 3, v48
            v_xor_b32 v51, 1, v50
            v_lshl_or_b32 v50, v51, 2, v50
            v_mul_u32_u24 v{V_IDX}, 0x1111, v50
            v_bfe_u32 v50, v48, 3, 1
            v_lshlrev_b32 v51, 4, v48
            v_add_u32 v51, {CONVA}, v51
            v_cmp_eq_u32 vcc, v50, v49
            v_mov_b32 v52, 0x40000000
            v_cndmask_b32 v{V_CA}, v52, v51, vcc
            s_mul_i32 s{S_T0}, s{S_WAVE}, {2 * ROWB}
            s_add_u32 s{S_T0}, s{S_T0}, {STG[0]}
        """)
        for dx in range(3):
            s(f"""
                v_add_u32 v50, {dx}, v48
                v_bfe_u32 v51, v50, 2, 2
                v_lshlrev_b32 v52, 1, v49
                v_xor_b32 v51, v51, v52
                v_lshl_add_u32 v51, v50, 2, v51
                v_lshl_add_u32 v{V_CB + 2 * dx}, v51, 4, s{S_T0}
                v_xor_b32 v51, 1, v51
                v_lshl_add_u32 v{V_CB + 2 * dx + 1}, v51, 4, s{S_T0}
            """)
        s(f"""
            s_lshl_b32 s{S_T0}, s{S_WAVE}, 1
            s_add_u32 s{S_T0}, s{S_T0}, s{S_Y0}
            s_lshl_b32 s{S_T0}, s{S_T0}, 9
            s_add_u32 s{S_T0}, s{S_T0}, s{S_X0}
            s_mul_i32 s{S_ROW}, s{S_T0}, 0xc0
            s_cmp_ge_u32 s{S_WAVE}, 1
            s_cselect_b32 s{S_W2M}, {100096 - 21 * 1024 - 71680}, 0
            s_lshl_b32 s{S_T0}, s{S_WAVE}, 10
            s_add_u32 s{S_T0}, s{S_T0}, {71680 + 5 * 4096}
            s_add_u32 s{S_W2M}, s{S_W2M}, s{S_T0}
            s_lshl_b32 s{S_T0}, s2, 2
            s_add_u32 s{S_T0}, s{S_T0}, s{S_WAVE}
            s_lshl_b32 s{S_T0}, s{S_T0}, 11
            s_add_u32 s{S_H}, s{S_T0}, {HOFF}
        """)
        for i in range(1, 8): s(f"s_add_u32 s{S_ROW + i}, s{S_ROW}, {98304 * (8 * (i >> 1) + (i & 1))}")
        for r in range(4): s(f"v_accvgpr_write_b32 a{A_ZERO + r}, 0")
        s(f"""
            v_bfe_u32 v50, v48, 2, 1
            v_cmp_eq_u32 vcc, v50, v49
            v_lshrrev_b32 v50, 3, v48
            v_bfe_u32 v51, v48, 1, 1
            v_lshl_or_b32 v50, v50, 1, v51
            v_mov_b32 v51, 15
            v_cndmask_b32 v50, v51, v50, vcc
            v_and_b32 v51, 1, v48
            v_lshlrev_b32 v51, 4, v51
            v_mov_b32 v52, 0x3c00
            v_lshlrev_b32 v52, v51, v52
        """)
        for r in range(8):
            s(f"""
                v_cmp_eq_u32 vcc, {r}, v50
                v_cndmask_b32 v{53 + (r & 1)}, 0, v52, vcc
                v_accvgpr_write_b32 a{A_TI + r}, v{53 + (r & 1)}
            """)
        s(f"""
            v_lshrrev_b32 v58, 4, v48
            v_bfe_u32 v51, v48, 2, 1
            v_lshl_or_b32 v58, v58, 1, v51
            v_lshlrev_b32 v59, 4, v0
            v_add_u32 v59, {CONVA}, v59
            v_mov_b32 v30, {SPARE}
            v_mov_b32 v57, 0
            ds_write_b32 v30, v57
        """)
        self.call_table()
        for k in range(4):
            for g_ in range(4):
                s(f"v_cmp_eq_u32 vcc, {g_}, v58\nv_cndmask_b32 v{50 + 4 * (k & 1) + g_}, 0, v{22 + k}, vcc")
            if k == 3:
                s(f"""
                    v_cmp_gt_u32 vcc, 96, v0
                    v_mov_b32 v60, 0x40000000
                    v_cndmask_b32 v59, v60, v59, vcc
                """)
            s(f"ds_write_b128 v59, {v(50 + 4 * (k & 1), 4)} offset:{4096 * k}")
        o = Op("s_barrier", tr=[("dma", 0)])
        s("s_waitcnt lgkmcnt(0)")
        self.em.emit(o)
        self.stamp()

    def w1_prep(self):
        L = []
        raw = [62 + 4 * j + d for j in range(24) for d in range(3)]
        L += ["v_pk_maximum3_f16 v28, v62, v63, v63", "v_pk_minimum3_f16 v29, v62, v63, v63"]
        for r in range(2, 72, 2):
            L += [f"v_pk_maximum3_f16 v28, v28, v{raw[r]}, v{raw[r+1]}", f"v_pk_minimum3_f16 v29, v29, v{raw[r]}, v{raw[r+1]}"]
        L += ["v_and_b32 v28, 0x7fff7fff, v28", "v_and_b32 v29, 0x7fff7fff, v29", "v_pk_max_u16 v28, v28, v29",
              "v_lshrrev_b32 v29, 16, v28", "v_and_b32 v28, 0xffff, v28", "v_max_u32 v28, v28, v29"]
        ops = [Op(x, stream="VP") for x in L]
        ops.append(Op("ds_max_u32 v30, v28", stream="DP", tw=[("max",)]))
        ops += [Op(x, stream="VP") for x in ("v_mov_b32 v26, 0x05040100", "v_mov_b32 v27, 0x07060302",
                                             f"v_lshl_or_b32 v{V_BB}, v{V_FLAG}, 16, v{V_BB}",
                                             f"v_lshlrev_b32 v{V_G}, 16, v{V_G}", f"v_lshlrev_b32 v{V_G+1}, 16, v{V_G+1}")]
        for i in range(3):
            for c6 in range(6):
                d, e = c6 >> 1, c6 & 1
                R = lambda j: 62 + 32 * i + 4 * j + d
                t0 = 38 + 4 * (c6 & 1)
                ops += [Op(f"v_perm_b32 v{t0 + t}, v{R(2*t+1)}, v{R(2*t)}, v{26 + e}", stream="VP") for t in range(4)]
                ops.append(Op(f"ds_write_b128 v{32 + 2 * i + (c6 == 5)}, {v(t0, 4)} offset:{6144 * c6}", stream="DP", tw=[("w1",)]))
        return ops

    def delta_ops(self):
        ops = [Op("ds_read_b32 v28, v30", stream="DP", tr=[("bar", 2)])]
        L = [f"v_readfirstlane_b32 s{S_DELTA}, v28", f"s_lshr_b32 s{S_DELTA}, s{S_DELTA}, 7", f"s_sub_i32 s{S_DELTA}, s{S_DELTA}, {127 + 2}",
             f"s_max_i32 s{S_DELTA}, s{S_DELTA}, 0", f"s_min_i32 s{S_DELTA}, s{S_DELTA}, 12", f"s_add_u32 s{S_MUL4}, s{S_DELTA}, 112",
             f"s_lshl_b32 s{S_MUL4}, s{S_MUL4}, 23", f"s_sub_u32 s{S_SCALE}, {f32(-CS)}, s{S_MUL4}", f"s_add_u32 s{S_UNSC}, 0x3f800000, s{S_MUL4}"]
        ops += [Op(x, stream="VP") for x in L]
        ops += [Op(f"v_mov_b32 v{V_SQ + r}, 0", stream="VP") for r in range(24)]
        return ops

    def dma_ops(self, q, tr, stream="DX"):
        p, cb = divmod(q, 3)
        ops = []
        so = ("0", f"s{S_64}", f"s{S_128}")[cb]
        for k in range(6):
            ops.append(Op(f"s_add_u32 m0, s{S_M0+k}, {STG[cb]}", stream=stream, tr=tr or ()))
            ops.append(Op(f"buffer_load_dwordx4 v{V_DMA+k}, {srd(S_X)}, {so} offen {self.cfg.xpol} lds", stream=stream,
                          tw=[("dma", q)], lat=self.cfg.dma_lat))
        return ops

    def conv_unit(self, q, bar_tok):
        p, cb = divmod(q, 3)
        ops = []
        Y = [V_Y + 48 * t + 16 * cb for t in range(2)]
        for t in range(2):
            ops.append(Op(f"v_mfma_f32_32x32x16_bf16 {v(Y[t],16)}, {a(A_ZERO,4)}, {a(A_ZERO,4)}, 0", stream="MC"))
        for dx in range(3):
            for ir in range(4):
                bb = A_CVB + 8 * (self.cvb % 3); self.cvb += 1
                for h in range(2):
                    ops.append(Op(f"ds_read_b128 {a(bb + 4*h,4)}, v{V_CB + 2*dx + h} offset:{STG[cb] - STG[0] + ir * ROWB}",
                                  stream="DC", tr=[bar_tok], tw=[("rd", q)]))
                if ir < 3:
                    ab = A_CVA + 4 * (self.cva % 3); self.cva += 1
                    ops.append(Op(f"ds_read_b128 {a(ab,4)}, v{V_CA} offset:{(cb * 9 + ir * 3 + dx) * 512}", stream="DC",
                                  tw=[("rd", q)]))
                    cur = ab
                    ops.append(Op(f"v_smfmac_f32_32x32x32_bf16 {v(Y[0],16)}, {a(cur,4)}, {a(bb,8)}, v{V_IDX}", stream="MC"))
                if ir > 0:
                    ops.append(Op(f"v_smfmac_f32_32x32x32_bf16 {v(Y[1],16)}, {a(prev,4)}, {a(bb,8)}, v{V_IDX}", stream="MC"))
                prev = cur
        return ops

    def ln_stats(self, p, cb):
        ops = []
        for t in range(2):
            Y = V_Y + 48 * t + 16 * cb
            S, Q = V_LN + 4 * t, V_LN + 4 * t + 2
            g = []
            for k in range(8):
                y = v(Y + 2 * k, 2)
                if cb == 0 and k == 0:
                    g.append(f"v_pk_mul_f32 {v(Q,2)}, {y}, {y}")
                else:
                    g.append(f"v_pk_fma_f32 {v(Q,2)}, {y}, {y}, {v(Q,2)}")
                if cb == 0 and k == 0: continue
                if cb == 0 and k == 1:
                    g.append(f"v_pk_add_f32 {v(S,2)}, {v(Y,2)}, {y}")
                else:
                    g.append(f"v_pk_add_f32 {v(S,2)}, {v(S,2)}, {y}")
            ops += [Op(x, stream="VL") for x in g]
        return ops

    def ln_finish(self, p):
        L = []
        for t in range(2):
            S, Q = V_LN + 4 * t, V_LN + 4 * t + 2
            L += [f"v_add_f32 v{S}, v{S}, v{S+1}", f"v_add_f32 v{Q}, v{Q}, v{Q+1}"]
        for t in range(2):
            S, Q = V_LN + 4 * t, V_LN + 4 * t + 2
            L += [f"v_permlane32_swap_b32 v{S}, v{Q}"]
        for t in range(2):
            S, Q = V_LN + 4 * t, V_LN + 4 * t + 2
            L += [f"v_add_f32 v{S}, v{S}, v{Q}"]
        for t in range(2):
            S, Q = V_LN + 4 * t, V_LN + 4 * t + 2
            L += [f"v_mov_b32 v{Q}, v{S}"]
        for t in range(2):
            S, Q = V_LN + 4 * t, V_LN + 4 * t + 2
            L += [f"v_permlane32_swap_b32 v{S}, v{Q}"]
        stages = [
            lambda S, Q: f"v_mul_f32 v{S}, {f32(1/96)}, v{S}",
            lambda S, Q: f"v_mul_f32 v{Q}, {f32(1/96)}, v{Q}",
            lambda S, Q: f"v_fma_f32 v{Q}, -v{S}, v{S}, v{Q}",
            lambda S, Q: f"v_max_f32 v{Q}, 0, v{Q}",
            lambda S, Q: f"v_add_f32 v{Q}, {f32(1e-5)}, v{Q}",
            lambda S, Q: f"v_rsq_f32 v{Q}, v{Q}",
            lambda S, Q: f"v_mul_f32 v{Q}, {f32(CS) if S != V_LN else 's%d' % S_SCALE}, v{Q}",
            lambda S, Q: f"v_mul_f32_e64 v{S}, -v{S}, v{Q}",
        ]
        for st in stages:
            for t in range(2):
                L.append(st(V_LN + 4 * t, V_LN + 4 * t + 2))
        ops = [Op(x, stream="VL") for x in L]
        for t in range(2):
            S, Q = V_LN + 4 * t, V_LN + 4 * t + 2
            for k in range(24):
                y = v(V_Y + 48 * t + 2 * k, 2)
                ops.append(Op(f"v_pk_fma_f32 {y}, {y}, {v(Q,2)}, {v(S,2)} op_sel_hi:[1,0,0]", stream="VL"))
        n = 0
        pend = []
        for t in range(2):
            for k in range(24):
                tmp = V_LN + 8 + (n % 8); n += 1
                ops.append(Op(f"v_cvt_pk_bf16_f32 v{tmp}, v{V_Y + 48*t + 2*k}, v{V_Y + 48*t + 2*k + 1}", stream="VL"))
                pend.append(Op(f"v_accvgpr_write_b32 a{A_LN(p, t) + k}, v{tmp}", stream="VL"))
                if len(pend) > 2: ops.append(pend.pop(0))
        return ops + pend

    def w_read(self, addr, buf, stream, tr=()):
        b, off = self.frag_base(addr)
        return Op(f"ds_read_b128 {a(buf,4)}, v{b} offset:{off}", stream=stream, tr=tr), buf

    def chain(self, acc, A, B, E=V_E, n=8):
        CV = [f"v_cvt_pk_f16_f32 v{A+i}, v{acc+2*i}, v{acc+2*i+1}" for i in range(n)]
        T = [f"v_pk_fma_f16 v{B+i}, v{A+i}, v{A+i}, s{S_K16}" for i in range(n)]
        Z = [f"v_pk_mul_f16 v{B+i}, v{A+i}, v{B+i}" for i in range(n)]
        hi = "dst_sel:WORD_1 dst_unused:UNUSED_PRESERVE src0_sel:WORD_1"
        def tr(op):
            l = []
            for i in range(n + 2):
                if i < n: l.append(f"{op} v{E+i}, v{B+i}")
                if i >= 2: l.append(f"{op}_sdwa v{E+i-2}, v{B+i-2} {hi}")
            return l
        D = [f"v_pk_add_f16 v{B+i}, v{E+i}, 1.0 op_sel_hi:[1,0]" for i in range(n)]
        Y = [f"v_pk_mul_f16 v{A+i}, v{A+i}, v{E+i}" for i in range(n)]
        head = []
        for i in range(n + 2):
            if i < n: head.append(CV[i])
            if 1 <= i < n + 1: head.append(T[i-1])
            if i >= 2: head.append(Z[i-2])
        return head, tr("v_exp_f16"), D, tr("v_rcp_f16"), Y

    def table_ops(self, acc, n, mn):
        ad = [Op(f"v_mad_u32_u16 v{acc+i}, v{acc+i}, 2, s{S_TBASE} op_sel:[1,0,0,0]", stream="VN") for i in range(n)]
        ga = [Op(f"{mn(i)} v{acc+i}, v{acc+i}", stream="DG", kind="dsg") for i in range(n)]
        return ad, ga

    def act_stream(self, N, bufs, g1, g2):
        ops = []
        O = lambda l, st: [Op(x, stream=st) for x in l]
        AD = lambda k: self.table_ops(bufs(k)[0], 16, lambda i: "ds_read_u16_d16_hi")
        ch = {}
        def CH(k):
            if k not in ch:
                b = bufs(k); ch[k] = self.chain(b[1], b[2], b[3])
            return ch[k]
        ops += g1(0, 0) + g1(0, 1)
        ad, ga = AD(0)
        ga[0].tr.add(("tabok",))
        ops += ad + ga + O(CH(0)[0], "VN") + g1(1, 0) + g2(0, 0)
        for k in range(N):
            head, E, D, R, Y = CH(k)
            last = k + 1 == N
            if not last: ops += g1(k + 1, 1)
            ops += O(E, "VT")
            D = O(D, "VN")
            if not last:
                ad, ga = AD(k + 1)
                lead = self.cfg.ad_lead
                ops += ad[:lead]; ad = ad[lead:]
                for i in range(8):
                    ops += ad[len(ad) * i // 8: len(ad) * (i + 1) // 8] + [D[i]]
                ops += ga
            else:
                ops += D
            if k + 2 < N: ops += g1(k + 2, 0)
            ops += O(R, "VT")
            Y = O(Y, "VN")
            if not last:
                h2 = O(CH(k + 1)[0], "VN")
                ops += h2[:8]
                for i in range(8): ops += h2[8 + 2 * i: 10 + 2 * i] + [Y[i]]
            else:
                ops += Y
            if not last: ops += g2(k + 1, 0)
            ops += g2(k, 1)
        return ops

    def phase1(self):
        c = self.cfg
        self.cvb = self.cva = 0
        ops = []
        bar = lambda name, tr: Op("s_barrier", stream="X", tr=tr, tw=[name])
        adv = lambda: [Op(f"v_add_u32 v{V_DMA+k}, {8 * 98304}, v{V_DMA+k}", stream="VL") for k in range(6)]
        ops.append(Op("s_nop 0", stream="X", tw=[("bar", 0), ("dma", 0), ("dma", 1), ("dma", 2)]))
        landed = lambda f: max([d for q, d in self.em.vmq if f(q)] + [0])
        prep = self.w1_prep()
        prep[0].earliest = landed(lambda q: ("v", 62 + 32 * 2 + 28) in q.defs)
        ops += prep
        def unit(q):
            r = []
            if q > 0:
                r.append(bar(("bar", q), [("rd", q - 1), ("dma", q)] + ([("max",)] if q == 2 else [])))
                if q < 3: r[-1].earliest = landed(lambda o: ("dma", q) in o.tw)
                else: r[-1].tr.add(("pace", 12 * (q // 3 - 1) + c.upace[q % 3]))
                if q + 2 < 12 and q != 3:
                    if (q + 2) % 3 == 0: r += adv()
                    r += self.dma_ops(q + 2, [("bar", q)])
            if q == 2: r += self.delta_ops()
            r += self.conv_unit(q, ("bar", q))
            st = self.ln_stats(q // 3, q % 3)
            if q == 3: st[0].tr.add(("tabok",))
            r += st
            if q == 2:
                r.append(bar(("bar", "2b"), [("rd", 2), ("w1",)]))
                r += self.dma_ops(5, [("bar", "2b")])
            if q % 3 == 2: r += self.ln_finish(q // 3)
            if q == 2:
                r[-1].tw.add(("ln0",))
                chk = Op(f"s_cmp_lg_u32 s{S_DELTA}, 0", stream="X", tr=[("ln0",)], tw=[("tabok",)])
                chk.group = [Op("s_cbranch_scc1 L_redo"), Op("L_back:")]
                r.append(chk)
            return r
        for q in range(3): ops += unit(q)
        def bufs(k):
            A = V_A + 8 * (k % 2) if k < 36 else V_Y + 8 * (k - 36)
            return (V_POOL + 16 * (k % 2), V_POOL + 32, A, V_B + 8 * (k % 2))
        self.wn = 0
        frag = {}
        extra = {}
        def g1(k, t):
            p, ch = divmod(k, 12); r = []
            if (k, t) in extra: r += extra[(k, t)]()
            acc = bufs(k)[t]
            for ks in range(6):
                if t == 0:
                    op, frag[ks] = self.w_read(w1_addr(6 * ch + ks), A_W + 4 * (self.wn % 12), "D1", [("bar", "2b")] if k == 0 else ()); self.wn += 1
                    r.append(op)
                cc = "0" if ks == 0 else v(acc, 16)
                ln, w = a(A_LN(p, t) + 4 * ks, 4), a(frag[ks], 4)
                r.append(Op(f"v_mfma_f32_32x32x16_bf16 {v(acc,16)}, {ln if t == 0 else w}, {w if t == 0 else ln}, {cc}", stream="M1"))
            if t == 1: r[-1].tw.add(("pace", k))
            return r
        def g2(k, t):
            p, ch = divmod(k, 12)
            sq = V_SQ + 2 * ch; b = bufs(k)
            if t == 0:
                return [Op(f"v_pk_add_f32 {v(sq,2)}, {v(sq,2)}, {v(b[0]+2*i,2)}", stream="VW") for i in reversed(range(8))]
            r = []
            if p < 3:
                r.append(Op(f"s_add_u32 s{S_HT}, s{S_H}, {(12 * p + ch) << 21}", stream="DH"))
                for ks in range(2):
                    r.append(Op(f"buffer_store_dwordx4 {v(b[2] + 4*ks,4)}, v{V_LANE16}, {srd(S_WS)}, s{S_HT} offen offset:{1024 * ks} {c.hpol}", stream="DH"))
            X = bufs(k + 1)[0]
            for ks in range(2):
                r.append(Op(f"v_mfma_f32_32x32x16_f16 {v(X,16)}, {v(b[2] + 4*ks,4)}, {a(A_TI + 4*ks,4)}, {'0' if ks == 0 else v(X,16)}", stream="MT"))
            r += [Op(f"v_pk_fma_f32 {v(sq,2)}, {v(X+2*i,2)}, {v(X+2*i,2)}, {v(sq,2)}", stream="VW") for i in range(8)]
            return r
        for p in range(3):
            extra[(12 * p + 11, 1)] = (lambda p=p: unit(3 * p + 3) + unit(3 * p + 4) + unit(3 * p + 5))
        def tail():
            r = [bar(("bar", 12), [("rd", 11)])]
            for k in range(18):
                r.append(Op(f"s_add_u32 s{S_T0}, s{S_T1}, {4096 * k}", stream="DX", tr=[("bar", 12)]))
                if k == 5: r.append(Op(f"s_mov_b32 m0, s{S_W2M}", stream="DX"))
                else: r.append(Op(f"s_add_u32 m0, s{S_T0}, {71680 if k < 5 else 100096 - 21 * 1024}", stream="DX"))
                r.append(Op(f"buffer_load_dwordx4 v{V_LANE16}, {srd(S_W2)}, s{S_T0} offen lds", stream="DX", tw=[("w2raw",)], lat=c.dma_lat))
            r.append(Op(f"buffer_load_dword v{V_FLAG}, v{V_CB}, {srd(S_DBG)}, 0 offen sc1", stream="DX", lat=c.dma_lat))
            r.append(Op(f"ds_write_b64 v{V_CB+1}, {a(A_ZERO,2)}", stream="DX", tr=[("bar", 12)], tw=[("w2raw",)]))
            r.append(Op(f"ds_write_b32 v{V_CB+2}, v{V_BB}", stream="DX", tr=[("bar", 12)], tw=[("w2raw",)]))
            return r
        def tail_pre():
            L = [f"s_lshl_b32 s{S_T1}, s{S_WAVE}, 10",
                 f"v_mov_b32 v{V_CB}, 0",
                 f"v_min_u32 v{V_CB+1}, 239, v0",
                 f"v_lshlrev_b32 v{V_CB+1}, 3, v{V_CB+1}",
                 f"v_add_u32 v{V_CB+1}, {SUMS}, v{V_CB+1}",
                 f"v_lshrrev_b32 v{V_CB+2}, 2, v{V_LANE16}",
                 f"v_min_u32 v{V_CB+2}, 188, v{V_CB+2}",
                 f"s_mul_i32 s{S_T3}, s{S_WAVE}, 192",
                 f"s_add_u32 s{S_T3}, s{S_T3}, {BVEC}",
                 f"v_add_u32 v{V_CB+2}, s{S_T3}, v{V_CB+2}"]
            return [Op(x, stream="VL") for x in L]
        extra[(37, 0)] = lambda: tail_pre() + tail()
        extra[(46, 0)] = lambda: [bar(("bar", 13), [("w2raw",), ("pace", 44)])]
        ops += self.act_stream(48, bufs, g1, g2)
        return self.run(ops, ["MT", "M1", "MC"], ["VW", "VL", "VP", "VN", "VT"], ["D1", "DG", "DC", "DH", "DP", "DX"], ["X"], "phase1", c.gap1)

    def run(self, ops, ms, vs, ds, xs, name, gap):
        c = self.cfg
        if c.nosched:
            for o in ops: self.em.emit(o)
            return
        tr = []
        m = self.em.mach
        t0, f0, n0 = m.t, m.fetch_stall, len(self.em.out)
        step = len(ops) // c.fine if c.stamps and c.fine else 0
        def hook(i):
            if step and i and i % step == 0 and i // step < c.fine: self.stamp()
            if c.prefetch and c.jit and self.em.out[-1].kind == "m" and self.pf_next - (m.addr - self.pc_addr) < c.jit:
                self.code_prefetch()
        schedule(self.em, ops, ms, vs, ds, xs, trace=tr, dlimit=c.dlimit, gap=gap, hook=hook, drop=set(c.abl.split(",")))
        st = {}
        for now, d, s, txt in tr: st[s] = st.get(s, 0) + d
        new = self.em.out[n0:]
        print(f"; {name}: {len(new)} instrs, model {m.t - t0} cycles, issue sum {sum(o.cost for o in new)}, fetch stalls {m.fetch_stall - f0}, "
              f"waits {sum(o.kind == 'wait' for o in new)}, nops {sum(o.cost // 4 for o in new if o.kind == 'nop')}, stalls {st}", file=sys.stderr)
        if c.trace:
            with open(f"trace_{name}.txt", "w") as f:
                prev = t0
                for o in new:
                    if o.kind == 'label': continue
                    gap = o.t_issue - prev
                    f.write(f"{o.t_issue - t0:6d} {'+%d' % gap if gap > 0 else '':>5s} {o.stream or '':3s} {o.text}\n")
                    prev = o.t_issue + o.cost

    def h_loads(self, k, stream="DH"):
        p, ch = 3 - k // 12, k % 12
        r = []
        r.append(Op(f"s_add_u32 s{S_HT}, s{S_H}, {(12 * p + ch) << 21}", stream=stream))
        for ks in range(2):
            r.append(Op(f"buffer_load_dwordx4 {a(A_H + 8 * ((k - 12) % 10) + 4*ks,4)}, v{V_LANE16}, {srd(S_WS)}, s{S_HT} offen offset:{1024 * ks} {self.cfg.hpol2}",
                        stream=stream, lat=self.cfg.x_lat))
        return r

    def x_loads(self, n):
        p, k = 3 - n // 6, n % 6; blk, t = divmod(k, 2)
        return [Op(f"buffer_load_dwordx4 {a(A_X + 8 * (n % 2) + 4*q,4)}, v{V_CA}, {srd(S_X)}, s{S_ROW + 2*p + t} offen offset:{64*blk + 16*q} {self.cfg.xpol2}",
                   stream="DX", lat=self.cfg.x_lat) for q in range(2)]

    def switch(self):
        c = self.cfg
        s = self.seq
        W2R, BS, ACC = 62, 134, 22
        self.stamp()
        for ch in range(12): s(f"v_add_f32 v{V_SQ + 2*ch}, v{V_SQ + 2*ch}, v{V_SQ + 2*ch + 1}")
        s(f"v_lshrrev_b32 v46, 2, v{V_LANE16}\nv_add_u32 v46, {SUMS}, v46")
        for i in range(6): s(f"v_permlane32_swap_b32 v{V_SQ + 4*i}, v{V_SQ + 4*i + 2}")
        for i in range(6): s(f"v_add_f32 v{V_SQ + 4*i}, v{V_SQ + 4*i}, v{V_SQ + 4*i + 2}")
        for i in range(6): s(f"ds_add_f32 v46, v{V_SQ + 4*i} offset:{256 * i}")
        s(f"""
            v_lshlrev_b32 v58, 2, v0
            v_add_u32 v48, {SUMS}, v58
            s_cmp_ge_u32 s{S_WAVE}, 2
            s_cselect_b32 s{S_T1}, 0x7ff00000, 0
            v_add_u32 v59, s{S_T1}, v58
            s_waitcnt vmcnt(0) lgkmcnt(0)
            s_barrier
            ds_read_b32 v60, v48
            ds_read_b32 v61, v48 offset:1024
            v_readfirstlane_b32 s{S_T0}, v{V_FLAG}
            s_mov_b32 s{S_CNT}, 0
            s_cmp_ge_u32 s{S_T0}, 8
            s_cbranch_scc1 L_flag_ok
            L_flag_poll:
            buffer_load_dword v{V_FLAG}, v{V_CB}, {srd(S_DBG)}, 0 offen sc1
            s_add_u32 s{S_CNT}, s{S_CNT}, 1
            s_waitcnt vmcnt(0)
            v_readfirstlane_b32 s{S_T0}, v{V_FLAG}
            s_cmp_gt_u32 s{S_CNT}, 0x40000
            s_cbranch_scc1 L_flag_ok
            s_cmp_ge_u32 s{S_T0}, 8
            s_cbranch_scc0 L_flag_poll
            L_flag_ok:
            s_lshl_b32 s{S_T0}, s{S_SHARD}, 11
            s_waitcnt vmcnt(0) lgkmcnt(0)
            buffer_atomic_add_f32 v60, v58, {srd(S_WS)}, s{S_T0} offen
            buffer_atomic_add_f32 v61, v59, {srd(S_WS)}, s{S_T0} offen offset:1024
            s_mov_b64 s[{S_MODE}:{S_MODE+1}], -1
        """)
        if c.prefetch:
            while self.pf_next < self.em.mach.addr + c.jit + 8192: self.code_prefetch()
        self.call_table()
        s(f"""
            v_lshrrev_b32 v46, 4, v{V_LANE16}
            v_lshrrev_b32 v47, 5, v46
            v_bfe_u32 v48, v46, 2, 2
            v_lshl_add_u32 v48, v47, 2, v48
            v_mul_u32_u24 v48, 6, v48
            v_bfe_u32 v49, v46, 4, 1
            v_lshlrev_b32 v49, 4, v49
            v_and_b32 v50, 1, v46
            v_lshl_add_u32 v49, v50, 3, v49
            v_bfe_u32 v50, v46, 1, 1
            v_lshl_add_u32 v49, v50, 2, v49
            v_lshlrev_b32 v49, 1, v49
            s_mul_i32 s{S_T0}, s{S_WAVE}, 3
            s_cmp_ge_u32 s{S_WAVE}, 2
            s_cselect_b32 s{S_T1}, 186, 0
            s_add_u32 s{S_T0}, s{S_T0}, s{S_T1}
            v_add_u32 v48, s{S_T0}, v48
            v_mov_b32 v51, {100096 - 112 * 192}
            v_mov_b32 v52, 71680
        """)
        for cl in range(3):
            for ks in range(2):
                for jh in range(2):
                    t = 53 + 2 * jh
                    s(f"""
                        v_add_u32 v{t}, {cl + 6 * (16 * ks + 8 * jh)}, v48
                        v_cmp_gt_u32 vcc, 112, v{t}
                        v_mul_u32_u24 v{t}, 192, v{t}
                        v_add_u32 v{t}, v{t}, v49
                        v_cndmask_b32 v{t+1}, v51, v52, vcc
                        v_add_u32 v{t}, v{t}, v{t+1}
                    """)
                    for blk in range(3):
                        f = (cl * 2 + ks) * 3 + blk
                        s(f"ds_read_b64_tr_b16 {v(W2R + 4*f + 2*jh, 2)}, v{t} offset:{64 * blk}")
        s(f"""
            s_mul_i32 s{S_T0}, s{S_WAVE}, 192
            v_lshlrev_b32 v50, 3, v47
            v_add_u32 v50, s{S_T0}, v50
            v_add_u32 v51, {SUMS}, v50
            v_add_u32 v50, {BVEC}, v50
            v_and_b32 v53, 31, v46
            v_mul_u32_u24 v54, 192, v53
            v_lshl_add_u32 v{V_CA}, v47, 5, v54
            v_lshl_add_u32 v{V_CB}, v47, 4, v54
        """)
        for cl in range(3):
            for ks in range(2):
                for jh in range(2):
                    s(f"ds_read_b64 {v(BS + 4*(cl*2+ks) + 2*jh, 2)}, v50 offset:{2 * (32*cl + 16*ks + 8*jh)}")
        s(f"""
            s_waitcnt vmcnt(0)
            s_barrier
            s_cmp_lg_u32 s{S_WAVE}, 0
            s_cbranch_scc1 L_arrived
            v_lshlrev_b32 v54, 7, v{V_LANE16}
            s_lshl_b32 s{S_T0}, s{S_SHARD}, 8
            s_add_u32 s{S_T0}, s{S_T0}, 0x10000
            v_mov_b32 v55, 1
            s_mov_b64 exec, 0xff
            buffer_atomic_add v55, v54, {srd(S_WS)}, s{S_T0} offen
            s_mov_b64 exec, -1
            L_arrived:
        """)
        self.stamp()
        for blk in range(3):
            for g in range(6):
                s(f"v_mfma_f32_32x32x16_bf16 {v(ACC,16)}, {v(BS + 4*g,4)}, {v(W2R + 4*(3*g+blk),4)}, {'0' if g == 0 else v(ACC,16)}")
            s(f"v_mov_b32 v{56 + blk}, v{ACC}")
        s(f"""
            v_lshlrev_b32 v52, 2, v53
            v_add_u32 v52, {BIASV}, v52
            s_mov_b32 exec_hi, 0
            ds_add_f32 v52, v56
            ds_add_f32 v52, v57 offset:128
            ds_add_f32 v52, v58 offset:256
            s_mov_b64 exec, -1
        """)
        for r in range(72):
            s(f"""
                v_lshlrev_b32 v{54 + 2*(r&1)}, 16, v{W2R + r}
                v_and_b32 v{55 + 2*(r&1)}, 0xffff0000, v{W2R + r}
                v_cvt_pk_f16_f32 v{W2R + r}, v{54 + 2*(r&1)}, v{55 + 2*(r&1)}
            """)
        s(f"""
            v_bfe_u32 v54, v53, 2, 1
            v_lshrrev_b32 v55, 3, v53
            v_cmp_eq_u32 vcc, v54, v47
            v_mov_b32 v54, 7
            v_cndmask_b32 v55, v54, v55, vcc
            v_mov_b32 v56, 0x3f80
        """)
        for g in range(4):
            s(f"""
                v_cmp_eq_u32 vcc, {g}, v55
                v_cndmask_b32 v57, 0, v56, vcc
                v_accvgpr_write_b32 a{A_ID + g}, v57
            """)
        s(f"""
            v_mov_b32 v56, 0x3f803f80
            v_cmp_eq_u32 vcc, 0, v47
            v_cndmask_b32 v57, 0, v56, vcc
            v_accvgpr_write_b32 a{A_ONES}, v57
            v_accvgpr_write_b32 a{A_ONES+1}, 0
            v_accvgpr_write_b32 a{A_ONES+2}, 0
            v_accvgpr_write_b32 a{A_ONES+3}, 0
        """)
        s(f"""
            s_cmp_lg_u32 s{S_WAVE}, 0
            s_cbranch_scc1 L_released
            s_lshr_b32 s{S_T0}, s2, 3
            s_and_b32 s{S_T0}, s{S_T0}, 7
            s_lshl_b32 s{S_T0}, s{S_T0}, 11
            s_add_u32 s{S_T0}, s{S_T0}, 0x10000
            v_and_b32 v54, 7, v46
            v_lshlrev_b32 v54, 8, v54
            s_mov_b32 s{S_CNT}, 0
            L_poll:
            buffer_load_dword v55, v54, {srd(S_WS)}, s{S_T0} offen sc1
            s_add_u32 s{S_CNT}, s{S_CNT}, 1
            s_waitcnt vmcnt(0)
            v_cmp_gt_u32 vcc, 32, v55
            s_cmp_gt_u32 s{S_CNT}, 0x40000
            s_cbranch_scc1 L_released
            s_cbranch_vccnz L_poll
            L_released:
            s_waitcnt vmcnt(0) lgkmcnt(0)
            s_barrier
        """)
        self.stamp()
        T = ACC
        s(f"""
            v_min_u32 v53, 47, v46
            v_lshlrev_b32 v53, 3, v53
            s_mul_i32 s{S_T0}, s{S_WAVE}, 384
            v_add_u32 v53, s{S_T0}, v53
        """)
        for j in range(8):
            if j % 2 == 0: s(f"s_movk_i32 s{S_T1}, {2048 * j}")
            s(f"buffer_load_dwordx2 {v(T + 2*j, 2)}, v53, {srd(S_WS)}, s{S_T1} offen offset:{2048 * (j & 1)} sc1")
        for n in range(2):
            for o in self.x_loads(n): self.em.emit(o)
        for k in range(12, 12 + c.hpre):
            for o in self.h_loads(k): self.em.emit(o)
        for blk in range(3): s(f"ds_read_b32 v{56 + blk}, v52 offset:{128 * blk}")
        for blk in range(3):
            s(f"""
                v_cvt_pk_bf16_f32 v59, v{56 + blk}, v{56 + blk}
                v_lshlrev_b32 v59, 16, v59
                v_sub_f32 v59, v{56 + blk}, v59
                v_cvt_pk_bf16_f32 v59, v{56 + blk}, v59
                v_accvgpr_write_b32 a{A_BIAS + 2*blk}, v59
                v_accvgpr_write_b32 a{A_BIAS + 2*blk + 1}, 0
            """)
        for j in range(1, 8): s(f"v_pk_add_f32 {v(T,2)}, {v(T,2)}, {v(T + 2*j, 2)}")
        s(f"""
            v_mov_b32 v56, {f32(1e-6)}
            v_fmac_f32 v56, {f32(1 / (CS * CS))}, v{T}
            v_mov_b32 v57, {f32(1e-6)}
            v_fmac_f32 v57, {f32(1 / (CS * CS))}, v{T+1}
            v_sqrt_f32 v56, v56
            v_sqrt_f32 v57, v57
            v_cmp_gt_u32 vcc, 48, v46
            v_add_f32 v58, v56, v57
            v_cndmask_b32 v58, 0, v58, vcc
            v_add_f32_dpp v58, v58, v58 row_shr:1 row_mask:0xf bank_mask:0xf bound_ctrl:1
            v_add_f32_dpp v58, v58, v58 row_shr:2 row_mask:0xf bank_mask:0xf bound_ctrl:1
            v_add_f32_dpp v58, v58, v58 row_shr:4 row_mask:0xf bank_mask:0xf bound_ctrl:1
            v_add_f32_dpp v58, v58, v58 row_shr:8 row_mask:0xf bank_mask:0xf bound_ctrl:1
            s_nop 1
            v_readlane_b32 s{S_T0}, v58, 15
            v_readlane_b32 s{S_T1}, v58, 31
            v_readlane_b32 s{S_T2}, v58, 47
            v_mov_b32 v58, s{S_T0}
            v_add_f32 v58, s{S_T1}, v58
            v_add_f32 v58, s{S_T2}, v58
            s_lshl_b32 s{S_T0}, s{S_WAVE}, 2
            s_add_u32 s{S_T0}, s{S_T0}, {MEANP}
            v_mov_b32 v59, s{S_T0}
            v_mov_b32 v60, {MEANP}
            ds_write_b32 v59, v58
            s_waitcnt lgkmcnt(0)
            s_barrier
            ds_read_b128 {v(T,4)}, v60
            v_min_u32 v53, 47, v46
            v_lshlrev_b32 v53, 2, v53
            s_mul_i32 s{S_T0}, s{S_WAVE}, 192
            s_add_u32 s{S_T0}, s{S_T0}, {SUMS}
            v_add_u32 v53, s{S_T0}, v53
            v_mul_f32 v56, v56, v{V_G}
            v_mul_f32 v57, v57, v{V_G+1}
            v_add_f32 v{T}, v{T}, v{T+1}
            v_add_f32 v{T+2}, v{T+2}, v{T+3}
            v_add_f32 v{T}, v{T}, v{T+2}
            v_mov_b32 v58, {f32(1e-6)}
            v_fmac_f32 v58, {f32(1 / 384)}, v{T}
            v_rcp_f32 v58, v58
            s_mul_i32 s{S_T0}, s{S_WAVE}, 18
            v_fma_f32 v56, v56, v58, 1.0
            v_fma_f32 v57, v57, v58, 1.0
            v_mul_f32 v56, {f32(1 / CS)}, v56
            v_mul_f32 v57, {f32(1 / CS)}, v57
            v_cvt_pk_f16_f32 v56, v56, v57
            ds_write_b32 v53, v56
            s_add_u32 s{S_T0}, s{S_T0}, 70
            s_lshl_b32 s{S_T0}, s{S_T0}, 10
            v_add_u32 v54, s{S_T0}, v{V_LANE16}
            s_cmp_ge_u32 s{S_WAVE}, 1
            s_cselect_b32 s{S_T1}, {100096 - 21 * 1024 - 71680}, 0
            v_add_u32 v55, s{S_T1}, v54
            s_cmp_ge_u32 s{S_WAVE}, 2
            s_cselect_b32 s{S_T1}, {100096 - 21 * 1024 - 71680}, 0
            v_add_u32 v54, s{S_T1}, v54
            s_waitcnt lgkmcnt(0)
        """)
        for cl in range(3):
            for ks in range(2):
                for jh in range(2):
                    s(f"ds_read_b64 {v(BS + 4*(cl*2+ks) + 2*jh, 2)}, v51 offset:{2 * (32*cl + 16*ks + 8*jh)}")
        for f in range(18):
            for t in range(4):
                s(f"v_pk_mul_f16 v{W2R + 4*f + t}, v{W2R + 4*f + t}, v{BS + 4*(f//3) + t}")
            if f: s(f"ds_write_b128 v{54 if f - 1 < 3 else 55}, {v(W2R + 4*(f-1), 4)} offset:{1024 * (f - 1)}")
        s(f"ds_write_b128 v55, {v(W2R + 4*17, 4)} offset:{1024 * 17}")
        s(f"s_xor_b32 s{S_UNSC}, s{S_UNSC}, 0x80000000\ns_waitcnt lgkmcnt(0)\ns_barrier")
        self.stamp()

    def phase2(self):
        c = self.cfg
        POOL, YL, ACC2, STAGE = [8, 24], [40, 48], 62, 160
        nc = c.cmix
        O = lambda l, st: [Op(x, stream=st) for x in l]
        cnt = dict(w1=0, w2=0)
        W1B = lambda k: [A_W + 4 * i for i in range(5)] + ([72, 76, 80] if k >= 14 else [])
        W2B = lambda k: [A_W + 20 + 4 * i for i in range(7)] + ([84, 88, 92] if k >= 14 else [])
        pend = []
        ops = []
        def nextbuf(key, l):
            cnt[key] = (cnt[key] + 1) % len(l); return l[cnt[key]]
        def g1(k):
            p, ch = 3 - k // 12, k % 12; r = []
            acc = POOL[k % 2]
            for ks in range(6):
                op, f = self.w_read(w1_addr(6 * ch + ks), nextbuf("w1", W1B(k)), "D1"); r.append(op)
                r.append(Op(f"v_mfma_f32_32x32x16_bf16 {v(acc,16)}, {a(f,4)}, {a(A_LN(p, 0) + 4*ks,4)}, {'0' if ks == 0 else v(acc,16)}", stream="M"))
            n = 16 - 2 * nc
            ad, ga = self.table_ops(acc, n, lambda i: "ds_read_u16_d16_hi" if i & 1 else "ds_read_u16")
            r += ad + ga
            if nc:
                r += O([f"v_mul_f32 v{acc+i}, s{S_UNSC}, v{acc+i}" for i in range(n, 16)], "VN")
                for part in self.chain(acc + n, YL[k % 2] + 8 - nc, 56, 59, nc): r += O(part, "VN")
            return r
        f2 = {}
        def g2(k, t):
            pi, ch = divmod(k, 12); p = 3 - pi; r = []
            base = ACC2 + 48 * t
            if t == 0:
                acc, y = POOL[k % 2], YL[k % 2]
                r += O([f"v_or_b32 v{y+i}, v{acc+2*i}, v{acc+2*i+1}" for i in range(8 - nc)], "VO")
                B = lambda ks: v(y + 4 * ks, 4)
            elif pi == 0: B = lambda ks: v(V_Y + 8 * ch + 4 * ks, 4)
            else: B = lambda ks: a(A_H + 8 * ((k - 12) % 10) + 4 * ks, 4)
            if ch == 0:
                for blk in range(3):
                    r.append(Op(f"v_mfma_f32_32x32x16_bf16 {v(base + 16*blk,16)}, {a(A_BIAS + 2*blk,4)}, {a(A_ONES,4)}, 0", stream="M"))
            for ks in range(2):
                for blk in range(3):
                    if t == 1:
                        op, f2[(ks, blk)] = self.w_read(w2_addr((ch * 2 + ks) * 3 + blk), nextbuf("w2", W2B(k)), "D2"); r.append(op)
                    acc2 = v(base + 16 * blk, 16)
                    r.append(Op(f"v_mfma_f32_32x32x16_f16 {acc2}, {a(f2[(ks, blk)],4)}, {B(ks)}, {acc2}", stream="M"))
            first = next(o for o in r if o.kind == "m")
            first.tw.add(("pace", k, t))
            if t == 1:
                kk = k + c.hahead if k + c.hahead >= 12 + c.hpre else None
                if kk is not None and kk < 48:
                    l = self.h_loads(kk); l[0].tr.add(("pace", k, t)); r += l
            if ch % 4 == 1 + t:
                n = 6 * pi + 2 * (ch // 4) + t
                r.append(Op(f"v_smfmac_f32_32x32x32_bf16 {v(base + 16*(ch//4),16)}, {a(A_ID,4)}, {a(A_X + 8 * (n % 2),8)}, v{V_IDX}", stream="M"))
                if n + 2 < 24: r += self.x_loads(n + 2)
            if pend and (t == 0 and ch < 11 or (ch, t) == (1, 1)):
                o = pend.pop(0); o.tr.add(("pace", k, t)); r.append(o)
            if ch == 11:
                assert len(pend) == (0 if t == 1 or pi == 3 else 6)
                dst = STAGE + 24 * t
                for j in range(24):
                    r.append(Op(f"v_cvt_pk_bf16_f32 v{dst + j}, v{base + 2*j}, v{base + 2*j + 1}", stream="VE"))
                    if j % 4 == 3:
                        o = Op(f"buffer_store_dwordx4 {v(dst + j - 3, 4)}, v{V_CB}, {srd(S_OUT)}, s{S_ROW + 2*p + t} offen offset:{8 * (j - 3)} {c.opol}", stream="DS")
                        (r if pi == 3 else pend).append(o)
            return r
        ops += g1(0) + g1(1)
        for k in range(48):
            ops += g2(k, 1) + g2(k, 0)
            if k + 2 < 48: ops += g1(k + 2)
        self.run(ops, ["M"], ["VO", "VE", "VN"], ["D1", "D2", "DG", "DH", "DS", "DX"], [], "phase2", c.gap2)

    def dump_ln(self):
        s = self.seq
        s(f"""
            s_lshl_b32 s{S_T0}, s2, 2
            s_add_u32 s{S_T0}, s{S_T0}, s{S_WAVE}
            s_mul_i32 s{S_T0}, s{S_T0}, {192 * 256}
            s_add_u32 s{S_T0}, s{S_T0}, 0x100000
            v_lshrrev_b32 v46, 2, v{V_LANE16}
        """)
        for r in range(192):
            s(f"buffer_store_dword a{r}, v46, {srd(S_WS)}, s{S_T0} offen offset:{(r % 16) * 256}")
            if r % 16 == 15: s(f"s_add_u32 s{S_T0}, s{S_T0}, 4096\ns_waitcnt vmcnt(0)")

    def dump_stamps(self):
        s = self.seq
        s(f"""
            s_lshl_b32 s{S_T0}, s2, 2
            s_add_u32 s{S_T0}, s{S_T0}, s{S_WAVE}
            s_lshl_b32 s{S_T0}, s{S_T0}, 8
            s_add_u32 s{S_T0}, s{S_T0}, 0x20000
            v_lshrrev_b32 v46, 2, v{V_LANE16}
            buffer_store_dword v{V_STAMP}, v46, {srd(S_WS)}, s{S_T0} offen
        """)

    def build(self):
        c = self.cfg
        self.prologue()
        self.phase1()
        self.switch()
        self.phase2()
        if c.stamps:
            self.stamp()
            self.seq("s_waitcnt vmcnt(0)")
            self.stamp()
            self.dump_stamps()
        self.seq("L_last:\ns_endpgm")
        seq, t = self.em.out, self.em.mach.t
        if c.loop2:
            idx = [i for i, o in enumerate(seq) if o.mn == "v_mfma_f32_32x32x16_bf16" and o.stream == "M1"]
            idx = idx[len(idx) // 2:]
            i1, i2 = idx[144], idx[288]
            self.nstamp -= 2
            self.em = Emitter(); self.stamp(); pre = self.em.out
            self.em = Emitter()
            self.stamp(); self.seq("s_waitcnt vmcnt(0)"); self.stamp(); self.dump_stamps(); self.seq("L_last:\ns_endpgm")
            pre += [Op(f"s_mov_b32 s{S_CNT}, 4")]
            while sum(o.nbytes for o in pre) % 32: pre.append(Op("s_nop 0"))
            post = [Op(f"s_sub_u32 s{S_CNT}, s{S_CNT}, 1"), Op(f"s_cmp_lg_u32 s{S_CNT}, 0"), Op("s_cbranch_scc1 L_loop2"), Op("s_nop 15")]
            seq = seq[:i1] + pre + [Op("L_loop2:")] + seq[i1:i2] + post + self.em.out
        nb = sum(o.nbytes for o in seq)
        print(f"; total {len(seq)} instrs, {nb} bytes, model {t} cycles, waits {sum(o.kind == 'wait' for o in seq)}, nops {sum(o.cost // 4 for o in seq if o.kind == 'nop')}", file=sys.stderr)
        return seq, nb


HEADER = open("standalone__modern_conv_block_slak__vision.s.ref").read().split("; Override launch")[0]


def main():
    ap = argparse.ArgumentParser()
    ap.add_argument("-o", default="standalone__modern_conv_block_slak__vision.s")
    ap.add_argument("--cmix", type=int, default=2)
    ap.add_argument("--hpre", type=int, default=0)
    ap.add_argument("--hahead", type=int, default=10)
    ap.add_argument("--upace", type=lambda s: [int(x) for x in s.split(",")], default=[1, 4, 7])
    ap.add_argument("--hpol", default="")
    ap.add_argument("--hpol2", default="")
    ap.add_argument("--nosched", action="store_true")
    ap.add_argument("--trace", action="store_true")
    ap.add_argument("--abl", default="")
    ap.add_argument("--fine", type=int, default=0)
    ap.add_argument("--loop2", action="store_true")
    ap.add_argument("--ldslat", type=int, default=110)
    ap.add_argument("--mlat", type=int, default=56)
    ap.add_argument("--cover", type=int, default=0)
    ap.add_argument("--preread", default="")
    ap.add_argument("--jit", type=int, default=16384)
    ap.add_argument("--pf0", type=int, default=4)
    ap.add_argument("--dump", action="store_true")
    ap.add_argument("--stamps", action="store_true")
    ap.add_argument("--noprefetch", dest="prefetch", action="store_false")
    ap.add_argument("--xpol", default="")
    ap.add_argument("--xpol2", default="")
    ap.add_argument("--opol", default="")
    ap.add_argument("--gap1", type=int, default=40)
    ap.add_argument("--gap2", type=int, default=32)
    ap.add_argument("--ad_lead", type=int, default=6)
    ap.add_argument("--dlimit", type=int, default=3)
    ap.add_argument("--dma_lat", type=int, default=3500)
    ap.add_argument("--x_lat", type=int, default=2500)
    cfg = ap.parse_args()
    cfg.ws_bytes = WS_BYTES
    import asmlib
    asmlib.Machine.LDS_LAT = cfg.ldslat; asmlib.Machine.MLAT = cfg.mlat
    g = Gen(cfg)
    seq, nb = g.build()
    body = "\n".join(o.text for o in seq).replace("CODE_BYTES", str(nb - 0))
    txt = HEADER + f"""; @launch grid=(256,1,1) block=(256,1,1) lds={LDS_TOTAL}
.amdgcn_target "amdgcn-amd-amdhsa--gfx950"
.text
.globl {NAME}
.p2align 8
.type {NAME},@function
{NAME}:
{body}
.section .rodata,"a"
.p2align 6
.amdhsa_kernel {NAME}
  .amdhsa_next_free_vgpr 512
  .amdhsa_next_free_sgpr 102
  .amdhsa_accum_offset 256
  .amdhsa_group_segment_fixed_size 0
  .amdhsa_kernarg_size 72
  .amdhsa_user_sgpr_count 2
  .amdhsa_user_sgpr_kernarg_segment_ptr 1
  .amdhsa_system_sgpr_workgroup_id_x 1
  .amdhsa_float_denorm_mode_32 3
.end_amdhsa_kernel
"""
    open(cfg.o, "w").write(txt)


if __name__ == "__main__":
    main()
```

```python
import math, struct, sys, argparse
from asmlib import Op, Emitter, schedule

NAME = "standalone__modern_conv_block_slak__vision_kernel"

K0 = -2.0 * math.sqrt(2.0 / math.pi) * math.log2(math.e)
K1 = K0 * 0.044715
CS = -(abs(K1) ** (1.0 / 3.0))
KK = K0 / CS


def f32(x): return "0x%08x" % struct.unpack("<I", struct.pack("<f", x))[0]
def f16bits(x): return struct.unpack("<H", struct.pack("<e", x))[0]


LDS_TOTAL = 163840
STG = [71680, 100096, 121856]
ROWB = 2176
CONVA = 143616
TP = 93952
TN = TP + 65536
TP_DW, TN_DW = 1536, 1088
SPARE = 93440
BVEC = 93184
SUMS = 155392
BIASV = SUMS + 1536
MEANP = BIASV + 384
assert MEANP + 16 <= 157440 and TN + TN_DW * 4 == LDS_TOTAL


def w1_addr(f): return f * 1024 if f < 70 else 157440 + (f - 70) * 1024
def w2_addr(f): return 71680 + f * 1024 if f < 21 else 100096 + (f - 21) * 1024
def raw2_addr(row): return 71680 + row * 192 if row < 112 else 100096 + (row - 112) * 192


S_X, S_OUT, S_WS, S_W1, S_W2, S_DW, S_G, S_B, S_DBG, S_CODE = 4, 8, 12, 16, 20, 24, 28, 32, 36, 40
S_KA = 44
S_WAVE, S_Y0, S_X0, S_T0, S_T1, S_T2, S_T3 = 62, 63, 64, 65, 66, 67, 68
S_M0 = 70
S_ROW = 76
S_K16, S_TBASE, S_SCALE, S_UNSC, S_DELTA, S_64, S_128, S_SHARD = 84, 85, 86, 87, 88, 89, 90, 91
S_SAVE = 92
S_ST = 94
S_MUL4 = 96
S_CNT = 97
S_W2M = 69
S_PF = 100
S_H, S_HT = 3, 101
S_RET = 98
S_MODE = 92


def srd(b): return f"s[{b}:{b+3}]"
def v(n, k=1): return f"v{n}" if k == 1 else f"v[{n}:{n+k-1}]"
def a(n, k=1): return f"a{n}" if k == 1 else f"a[{n}:{n+k-1}]"


V_TID = 0
V_LANE16 = 1
V_FB1 = 2
V_FB2 = 3
V_IDX = 4
V_CA = 5
V_CB = 6
V_DMA = 12
V_G = 18
V_BB = 20
V_FLAG = 21
V_SQ = 22
V_LN = 46
V_E = 62
V_B = 70
V_A = 86
V_POOL = 102
V_PF = 158
V_STAMP = 159
V_Y = 160


def A_LN(p, t): return 24 * p if t == 0 else 96 + 24 * (p & 1)


A_CVB = 72
A_CVA = 144
A_TI = 156
A_ZERO = 164
A_W = 192
A_H = 96
A_X = 176
A_BIAS = 240
A_ONES = 246
A_ID = 250
A_PFD = 255
HOFF = 0x200000
WS_BYTES = HOFF + 1024 * 3 * 24576


class Gen:
    def __init__(self, cfg):
        self.cfg = cfg
        self.em = Emitter(cfg.cover)
        self.nstamp = 0
        self.mt = []

    def seq(self, lines):
        for l in lines.strip().split("\n"):
            l = l.split(";")[0].strip()
            if l:
                self.em.emit(Op(l))

    def cstamp(self):
        i = self.nstamp; self.nstamp += 1
        self.seq(f"""
            s_memtime s[{S_ST}:{S_ST+1}]
            s_waitcnt lgkmcnt(0)
            v_writelane_b32 v{V_STAMP}, s{S_ST}, {i}
        """)

    def stamp(self):
        if not self.cfg.stamps: return
        if self.cfg.chunk: return self.cstamp()
        i = self.nstamp; self.nstamp += 1
        self.seq(f"""
            s_memtime s[{S_ST}:{S_ST+1}]
            s_waitcnt lgkmcnt(0)
            v_writelane_b32 v{V_STAMP}, s{S_ST}, {i}
            s_memrealtime s[{S_ST}:{S_ST+1}]
            s_waitcnt lgkmcnt(0)
            v_writelane_b32 v{V_STAMP}, s{S_ST}, {32 + i}
        """)

    def code_prefetch(self):
        self.em.emit(Op(f"s_mov_b32 s{S_PF}, {self.pf_next}"))
        o = Op(f"buffer_load_dword a{A_PFD}, v{V_PF}, {srd(S_CODE)}, s{S_PF} offen", lat=1500); o.defs = []
        self.em.emit(o)
        self.pf_next += 8192

    def frag_base(self, addr):
        b = addr >> 16
        return (V_LANE16, V_FB1, V_FB2)[b], addr & 0xffff

    def table_routine(self):
        s = self.seq
        s("L_tab:")
        for k in range(11):
            neg = k >= 6
            i0 = 256 * k - (TP_DW if neg else 0)
            sg = "" if neg else "-"
            s(f"v_add_u32 v50, {i0}, v0" if i0 else "v_mov_b32 v50, v0")
            if k == 10: s(f"v_min_u32 v50, {TN_DW - 1}, v50")
            s(f"""
                v_lshl_or_b32 v52, v50, 17, v46
                v_add_u32 v53, 0x10000, v52
                v_mul_f32_e64 v52, {sg}v52, s{S_UNSC}
                v_mul_f32_e64 v53, {sg}v53, s{S_UNSC}
                v_fma_f32 v54, v52, v52, v47
                v_fma_f32 v55, v53, v53, v47
                v_mul_f32 v54, v52, v54
                v_mul_f32 v55, v53, v55
                v_exp_f32 v54, v54
                v_exp_f32 v55, v55
                v_lshlrev_b32 v50, 2, v50
                v_add_f32 v54, 1.0, v54
                v_add_f32 v55, 1.0, v55
                v_rcp_f32 v54, v54
                v_rcp_f32 v55, v55
                v_add_u32 v50, {TN if neg else TP}, v50
                v_mul_f32 v52, v52, v54
                v_mul_f32 v53, v53, v55
                v_cvt_pk_f16_f32 v54, v52, v53
                v_mul_f32 v52, v52, v52
                v_mul_f32 v53, v53, v53
                v_cvt_pk_bf16_f32 v52, v52, v53
                v_cndmask_b32 v{56 + (k & 1)}, v52, v54, s[{S_MODE}:{S_MODE+1}]
                ds_write_b32 v50, v{56 + (k & 1)}
            """)
        s(f"s_waitcnt lgkmcnt(0)\ns_setpc_b64 s[{S_RET}:{S_RET+1}]")

    def call_table(self):
        self.seq(f"""
            v_mov_b32 v46, 0x8000
            v_mov_b32 v47, {f32(KK)}
            s_waitcnt lgkmcnt(0)
            s_call_b64 s[{S_RET}:{S_RET+1}], L_tab
        """)
        self.em.mach.t += 1400

    def mk_srd(self, base, ka, size):
        self.seq(f"""
            s_mov_b32 s{base}, s{S_KA+2*ka}
            s_and_b32 s{base+1}, s{S_KA+2*ka+1}, 0xffff
            s_mov_b32 s{base+2}, {size}
            s_mov_b32 s{base+3}, 0x20000
        """)

    def prologue(self):
        c = self.cfg
        s = self.seq
        s(f"""
            s_cmp_ge_u32 s2, 0x100
            s_cbranch_scc0 L_go
            s_endpgm
        """)
        self.table_routine()
        s("L_redo:")
        self.call_table()
        s("s_barrier\ns_branch L_back")
        while self.em.mach.addr % 64: s("s_nop 0")
        self.em.mach.t = 0
        s(f"""
            L_go:
            s_load_dwordx16 s[{S_KA}:{S_KA+15}], s[0:1], 0
            s_load_dwordx2 s[{S_KA+16}:{S_KA+17}], s[0:1], 64
            s_getpc_b64 s[{S_CODE}:{S_CODE+1}]
            L_pc:
        """)
        self.pc_addr = self.em.mach.addr
        s(f"""
            s_sub_u32 s{S_CODE}, s{S_CODE}, {self.pc_addr}
            s_subb_u32 s{S_CODE+1}, s{S_CODE+1}, 0
            s_and_b32 s{S_CODE+1}, s{S_CODE+1}, 0xffff
            s_mov_b32 s{S_CODE+2}, L_last-{NAME}
            s_mov_b32 s{S_CODE+3}, 0x20000
            v_and_b32 v47, 63, v0
            v_lshlrev_b32 v{V_PF}, 7, v47
        """)
        self.pc_addr = 0
        self.pf_next = 0
        if c.prefetch:
            for _ in range(c.pf0): self.code_prefetch()
        s(f"""
            v_lshrrev_b32 v46, 6, v0
            v_lshlrev_b32 v{V_LANE16}, 4, v47
            v_readfirstlane_b32 s{S_WAVE}, v46
            s_and_b32 s{S_SHARD}, s2, 7
            s_lshr_b32 s{S_T0}, s2, 3
            s_lshr_b32 s{S_T1}, s{S_T0}, 4
            s_lshl_b32 s{S_Y0}, s{S_SHARD}, 1
            s_add_u32 s{S_Y0}, s{S_Y0}, s{S_T1}
            s_lshl_b32 s{S_Y0}, s{S_Y0}, 5
            s_and_b32 s{S_X0}, s{S_T0}, 15
            s_lshl_b32 s{S_X0}, s{S_X0}, 5
            v_and_b32 v48, 31, v47
            v_lshrrev_b32 v49, 5, v47
            s_lshl_b32 s{S_T2}, s{S_Y0}, 9
            s_add_u32 s{S_T2}, s{S_T2}, s{S_X0}
            s_sub_u32 s{S_T2}, s{S_T2}, 513
            s_mul_i32 s{S_T2}, s{S_T2}, 0xc0
            s_sub_u32 s{S_T1}, s{S_X0}, 1
            v_mov_b32 v55, 0x80000000
            s_lshl_b32 s{S_T3}, s{S_WAVE}, 6
        """)
        if c.stamps: s(f"v_mov_b32 v{V_STAMP}, 0")
        self.stamp()
        for k in range(6):
            s(f"s_add_u32 s{S_T0}, s{S_T3}, {256 * k}")
            if k == 5: s(f"s_min_u32 s{S_T0}, s{S_T0}, 1296")
            s(f"""
                v_add_u32 v50, s{S_T0}, v47
                s_lshl_b32 s{S_M0+k}, s{S_T0}, 4
                v_mul_u32_u24 v51, 482, v50
                v_lshrrev_b32 v51, 16, v51
                v_mul_u32_u24 v52, 136, v51
                v_sub_u32 v52, v50, v52
                v_lshrrev_b32 v53, 2, v52
                v_lshrrev_b32 v54, 4, v52
                v_xor_b32 v52, v52, v54
                v_and_b32 v52, 3, v52
                v_lshl_add_u32 v51, v51, 9, v53
                v_add_u32 v53, s{S_T1}, v53
                v_mul_u32_u24 v51, 0xc0, v51
                v_cmp_gt_u32 vcc, 0x200, v53
                v_lshl_add_u32 v51, v52, 4, v51
                v_add_u32 v51, s{S_T2}, v51
                v_cndmask_b32 v{V_DMA+k}, v55, v51, vcc
            """)
        for k in range(4):
            s(f"""
                v_lshrrev_b32 v51, 5, v0
                v_add_u32 v51, {8 * k}, v51
                v_mul_u32_u24 v52, 57, v51
                v_lshrrev_b32 v52, 9, v52
                v_mul_u32_u24 v53, 9, v52
                v_sub_u32 v53, v51, v53
                v_mul_u32_u24 v53, 96, v53
                v_lshl_add_u32 v53, v52, 5, v53
                v_add_lshl_u32 v{22 + k}, v53, v48, 1
            """)
        s(f"""
            v_mul_u32_u24 v50, 12, v48
            v_mul_u32_u24 v51, 3072, v49
            v_add_u32 v50, v50, v51
            s_mov_b32 s{S_64}, 64
            s_movk_i32 s{S_128}, 0x80
            s_waitcnt lgkmcnt(0)
        """)
        self.mk_srd(S_X, 0, 50331648)
        for op in self.dma_ops(0, None): self.em.emit(op)
        self.mk_srd(S_DW, 1, 1728)
        for k in range(4): s(f"buffer_load_ushort v{22 + k}, v{22 + k}, {srd(S_DW)}, 0 offen")
        self.mk_srd(S_W1, 2, 73728)
        for i in range(3):
            s(f"""
                s_mul_i32 s{S_T0}, s{S_WAVE}, 3
                s_add_u32 s{S_T0}, s{S_T0}, {i}
                s_lshr_b32 s{S_T1}, s{S_T0}, 1
                s_and_b32 s{S_T0}, s{S_T0}, 1
                s_mul_i32 s{S_T2}, s{S_T0}, 36
                s_add_u32 s{S_T2}, s{S_T2}, s{S_T1}
                s_mul_i32 s{S_T1}, s{S_T1}, {16 * 768}
                s_mul_i32 s{S_T0}, s{S_T0}, 384
                s_add_u32 s{S_T0}, s{S_T0}, s{S_T1}
                s_add_u32 s{S_T1}, s{S_T0}, {8 * 768}
            """)
            for j in range(8):
                s(f"buffer_load_dwordx3 {v(62 + 32 * i + 4 * j, 3)}, v50, {srd(S_W1)}, s{S_T0 if j < 4 else S_T1} offen offset:{(j & 3) * 768}")
            s(f"""
                s_cmp_ge_u32 s{S_T2}, 40
                s_cselect_b32 s{S_T3}, {157440 - 70 * 1024}, 0
                s_lshl_b32 s{S_T2}, s{S_T2}, 10
                v_add_u32 v{32 + 2 * i}, s{S_T2}, v{V_LANE16}
                v_add_u32 v{33 + 2 * i}, s{S_T3}, v{32 + 2 * i}
            """)
        for q in (1, 2):
            for op in self.dma_ops(q, None): self.em.emit(op)
        for base, ka, size in ((S_W2, 3, 73728), (S_G, 4, 768), (S_B, 5, 768), (S_OUT, 6, 50331648), (S_DBG, 7, 256), (S_WS, 8, c.ws_bytes)):
            self.mk_srd(base, ka, size)
        s(f"""
            v_min_u32 v50, 47, v47
            s_mul_i32 s{S_T0}, s{S_WAVE}, 96
            v_lshl_add_u32 v50, v50, 1, s{S_T0}
            v_and_b32 v52, 31, v50
            v_lshrrev_b32 v51, 5, v50
            v_mad_u32_u24 v52, v52, 6, v51
            s_cmp_ge_u32 s{S_WAVE}, 2
            s_cselect_b32 s{S_T0}, 186, 0
            v_add_lshl_u32 v52, v52, s{S_T0}, 1
            buffer_load_ushort v{V_G}, v52, {srd(S_G)}, 0 offen
            buffer_load_ushort v{V_G+1}, v52, {srd(S_G)}, 0 offen offset:12
            buffer_load_ushort v{V_BB}, v52, {srd(S_B)}, 0 offen
            buffer_load_ushort v{V_FLAG}, v52, {srd(S_B)}, 0 offen offset:12
        """)
        s(f"""
            s_cmp_ge_u32 s2, 8
            s_cbranch_scc1 L_noinit
            s_cmp_lg_u32 s{S_WAVE}, 3
            s_cbranch_scc1 L_noinit
            v_mov_b32 v52, 0
            v_mov_b32 v53, 0
            v_mov_b32 v54, 0
            v_mov_b32 v55, 0
            s_lshl_b32 s{S_T0}, s2, 11
            s_lshl_b32 s{S_T1}, s2, 8
            s_add_u32 s{S_T1}, s{S_T1}, 0x10000
            v_and_b32 v50, 7, v47
            v_lshlrev_b32 v50, 11, v50
            buffer_store_dwordx4 v[52:55], v{V_LANE16}, {srd(S_WS)}, s{S_T0} offen sc1
            buffer_store_dwordx4 v[52:55], v{V_LANE16}, {srd(S_WS)}, s{S_T0} offen offset:1024 sc1
            buffer_store_dword v52, v50, {srd(S_WS)}, s{S_T1} offen sc1
            s_waitcnt vmcnt(0)
            v_mov_b32 v52, 1
            v_mov_b32 v53, 0
            s_mov_b64 exec, 1
            buffer_atomic_add v52, v53, {srd(S_DBG)}, 0 offen
            s_mov_b64 exec, -1
            L_noinit:
        """)
        s(f"""
            v_add_u32 v{V_FB1}, 0x10000, v{V_LANE16}
            v_add_u32 v{V_FB2}, 0x20000, v{V_LANE16}
            s_mov_b32 s{S_K16}, 0x{f16bits(KK):04x}{f16bits(KK):04x}
            s_mov_b32 s{S_TBASE}, {TP}
            s_mov_b32 s{S_UNSC}, {f32(2.0 ** 112)}
            s_mov_b64 s[{S_MODE}:{S_MODE+1}], 0
            v_and_b32 v50, 3, v48
            v_xor_b32 v51, 1, v50
            v_lshl_or_b32 v50, v51, 2, v50
            v_mul_u32_u24 v{V_IDX}, 0x1111, v50
            v_bfe_u32 v50, v48, 3, 1
            v_lshlrev_b32 v51, 4, v48
            v_add_u32 v51, {CONVA}, v51
            v_cmp_eq_u32 vcc, v50, v49
            v_mov_b32 v52, 0x40000000
            v_cndmask_b32 v{V_CA}, v52, v51, vcc
            s_mul_i32 s{S_T0}, s{S_WAVE}, {2 * ROWB}
            s_add_u32 s{S_T0}, s{S_T0}, {STG[0]}
        """)
        for dx in range(3):
            s(f"""
                v_add_u32 v50, {dx}, v48
                v_bfe_u32 v51, v50, 2, 2
                v_lshlrev_b32 v52, 1, v49
                v_xor_b32 v51, v51, v52
                v_lshl_add_u32 v51, v50, 2, v51
                v_lshl_add_u32 v{V_CB + 2 * dx}, v51, 4, s{S_T0}
                v_xor_b32 v51, 1, v51
                v_lshl_add_u32 v{V_CB + 2 * dx + 1}, v51, 4, s{S_T0}
            """)
        s(f"""
            s_lshl_b32 s{S_T0}, s{S_WAVE}, 1
            s_add_u32 s{S_T0}, s{S_T0}, s{S_Y0}
            s_lshl_b32 s{S_T0}, s{S_T0}, 9
            s_add_u32 s{S_T0}, s{S_T0}, s{S_X0}
            s_mul_i32 s{S_ROW}, s{S_T0}, 0xc0
            s_cmp_ge_u32 s{S_WAVE}, 1
            s_cselect_b32 s{S_W2M}, {100096 - 21 * 1024 - 71680}, 0
            s_lshl_b32 s{S_T0}, s{S_WAVE}, 10
            s_add_u32 s{S_T0}, s{S_T0}, {71680 + 5 * 4096}
            s_add_u32 s{S_W2M}, s{S_W2M}, s{S_T0}
            s_mul_i32 s{S_T0}, s2, {36 * 8192}
            s_lshl_b32 s{S_H}, s{S_WAVE}, 11
            s_add_u32 s{S_T0}, s{S_T0}, s{S_H}
            s_add_u32 s{S_H}, s{S_T0}, {HOFF}
        """)
        for i in range(1, 8): s(f"s_add_u32 s{S_ROW + i}, s{S_ROW}, {98304 * (8 * (i >> 1) + (i & 1))}")
        for r in range(4): s(f"v_accvgpr_write_b32 a{A_ZERO + r}, 0")
        s(f"""
            v_bfe_u32 v50, v48, 2, 1
            v_cmp_eq_u32 vcc, v50, v49
            v_lshrrev_b32 v50, 3, v48
            v_bfe_u32 v51, v48, 1, 1
            v_lshl_or_b32 v50, v50, 1, v51
            v_mov_b32 v51, 15
            v_cndmask_b32 v50, v51, v50, vcc
            v_and_b32 v51, 1, v48
            v_lshlrev_b32 v51, 4, v51
            v_mov_b32 v52, 0x3c00
            v_lshlrev_b32 v52, v51, v52
        """)
        for r in range(8):
            s(f"""
                v_cmp_eq_u32 vcc, {r}, v50
                v_cndmask_b32 v{53 + (r & 1)}, 0, v52, vcc
                v_accvgpr_write_b32 a{A_TI + r}, v{53 + (r & 1)}
            """)
        s(f"""
            v_lshrrev_b32 v58, 4, v48
            v_bfe_u32 v51, v48, 2, 1
            v_lshl_or_b32 v58, v58, 1, v51
            v_lshlrev_b32 v59, 4, v0
            v_add_u32 v59, {CONVA}, v59
            v_mov_b32 v30, {SPARE}
            v_mov_b32 v57, 0
            ds_write_b32 v30, v57
        """)
        self.call_table()
        for k in range(4):
            for g_ in range(4):
                s(f"v_cmp_eq_u32 vcc, {g_}, v58\nv_cndmask_b32 v{50 + 4 * (k & 1) + g_}, 0, v{22 + k}, vcc")
            if k == 3:
                s(f"""
                    v_cmp_gt_u32 vcc, 96, v0
                    v_mov_b32 v60, 0x40000000
                    v_cndmask_b32 v59, v60, v59, vcc
                """)
            s(f"ds_write_b128 v59, {v(50 + 4 * (k & 1), 4)} offset:{4096 * k}")
        o = Op("s_barrier", tr=[("dma", 0)])
        s("s_waitcnt lgkmcnt(0)")
        self.em.emit(o)
        self.stamp()

    def w1_prep(self):
        L = []
        raw = [62 + 4 * j + d for j in range(24) for d in range(3)]
        L += ["v_pk_maximum3_f16 v28, v62, v63, v63", "v_pk_minimum3_f16 v29, v62, v63, v63"]
        for r in range(2, 72, 2):
            L += [f"v_pk_maximum3_f16 v28, v28, v{raw[r]}, v{raw[r+1]}", f"v_pk_minimum3_f16 v29, v29, v{raw[r]}, v{raw[r+1]}"]
        L += ["v_and_b32 v28, 0x7fff7fff, v28", "v_and_b32 v29, 0x7fff7fff, v29", "v_pk_max_u16 v28, v28, v29",
              "v_lshrrev_b32 v29, 16, v28", "v_and_b32 v28, 0xffff, v28", "v_max_u32 v28, v28, v29"]
        ops = [Op(x, stream="VP") for x in L]
        ops.append(Op("ds_max_u32 v30, v28", stream="DP", tw=[("max",)]))
        ops += [Op(x, stream="VP") for x in ("v_mov_b32 v26, 0x05040100", "v_mov_b32 v27, 0x07060302",
                                             f"v_lshl_or_b32 v{V_BB}, v{V_FLAG}, 16, v{V_BB}",
                                             f"v_lshlrev_b32 v{V_G}, 16, v{V_G}", f"v_lshlrev_b32 v{V_G+1}, 16, v{V_G+1}")]
        for i in range(3):
            for c6 in range(6):
                d, e = c6 >> 1, c6 & 1
                R = lambda j: 62 + 32 * i + 4 * j + d
                t0 = 38 + 4 * (c6 & 1)
                ops += [Op(f"v_perm_b32 v{t0 + t}, v{R(2*t+1)}, v{R(2*t)}, v{26 + e}", stream="VP") for t in range(4)]
                ops.append(Op(f"ds_write_b128 v{32 + 2 * i + (c6 == 5)}, {v(t0, 4)} offset:{6144 * c6}", stream="DP", tw=[("w1",)]))
        return ops

    def delta_ops(self):
        ops = [Op("ds_read_b32 v28, v30", stream="DP", tr=[("bar", 2)])]
        L = [f"v_readfirstlane_b32 s{S_DELTA}, v28", f"s_lshr_b32 s{S_DELTA}, s{S_DELTA}, 7", f"s_sub_i32 s{S_DELTA}, s{S_DELTA}, {127 + 2}",
             f"s_max_i32 s{S_DELTA}, s{S_DELTA}, 0", f"s_min_i32 s{S_DELTA}, s{S_DELTA}, 12", f"s_add_u32 s{S_MUL4}, s{S_DELTA}, 112",
             f"s_lshl_b32 s{S_MUL4}, s{S_MUL4}, 23", f"s_sub_u32 s{S_SCALE}, {f32(-CS)}, s{S_MUL4}", f"s_add_u32 s{S_UNSC}, 0x3f800000, s{S_MUL4}"]
        ops += [Op(x, stream="VP") for x in L]
        ops += [Op(f"v_mov_b32 v{V_SQ + r}, 0", stream="VP") for r in range(24)]
        return ops

    def dma_ops(self, q, tr, stream="DX"):
        p, cb = divmod(q, 3)
        ops = []
        so = ("0", f"s{S_64}", f"s{S_128}")[cb]
        for k in range(6):
            ops.append(Op(f"s_add_u32 m0, s{S_M0+k}, {STG[cb]}", stream=stream, tr=tr or ()))
            ops.append(Op(f"buffer_load_dwordx4 v{V_DMA+k}, {srd(S_X)}, {so} offen {self.cfg.xpol} lds", stream=stream,
                          tw=[("dma", q)], lat=self.cfg.dma_lat))
        return ops

    def conv_unit(self, q, bar_tok):
        p, cb = divmod(q, 3)
        ops = []
        Y = [V_Y + 48 * t + 16 * cb for t in range(2)]
        for t in range(2):
            ops.append(Op(f"v_mfma_f32_32x32x16_bf16 {v(Y[t],16)}, {a(A_ZERO,4)}, {a(A_ZERO,4)}, 0", stream="MC"))
        for dx in range(3):
            for ir in range(4):
                bb = A_CVB + 8 * (self.cvb % 3); self.cvb += 1
                for h in range(2):
                    ops.append(Op(f"ds_read_b128 {a(bb + 4*h,4)}, v{V_CB + 2*dx + h} offset:{STG[cb] - STG[0] + ir * ROWB}",
                                  stream="DC", tr=[bar_tok], tw=[("rd", q)]))
                if ir < 3:
                    ab = A_CVA + 4 * (self.cva % 3); self.cva += 1
                    ops.append(Op(f"ds_read_b128 {a(ab,4)}, v{V_CA} offset:{(cb * 9 + ir * 3 + dx) * 512}", stream="DC",
                                  tw=[("rd", q)]))
                    cur = ab
                    ops.append(Op(f"v_smfmac_f32_32x32x32_bf16 {v(Y[0],16)}, {a(cur,4)}, {a(bb,8)}, v{V_IDX}", stream="MC"))
                if ir > 0:
                    ops.append(Op(f"v_smfmac_f32_32x32x32_bf16 {v(Y[1],16)}, {a(prev,4)}, {a(bb,8)}, v{V_IDX}", stream="MC"))
                prev = cur
        return ops

    def ln_stats(self, p, cb):
        ops = []
        for t in range(2):
            Y = V_Y + 48 * t + 16 * cb
            S, Q = V_LN + 4 * t, V_LN + 4 * t + 2
            g = []
            for k in range(8):
                y = v(Y + 2 * k, 2)
                if cb == 0 and k == 0:
                    g.append(f"v_pk_mul_f32 {v(Q,2)}, {y}, {y}")
                else:
                    g.append(f"v_pk_fma_f32 {v(Q,2)}, {y}, {y}, {v(Q,2)}")
                if cb == 0 and k == 0: continue
                if cb == 0 and k == 1:
                    g.append(f"v_pk_add_f32 {v(S,2)}, {v(Y,2)}, {y}")
                else:
                    g.append(f"v_pk_add_f32 {v(S,2)}, {v(S,2)}, {y}")
            ops += [Op(x, stream="VL") for x in g]
        return ops

    def ln_finish(self, p):
        L = []
        for t in range(2):
            S, Q = V_LN + 4 * t, V_LN + 4 * t + 2
            L += [f"v_add_f32 v{S}, v{S}, v{S+1}", f"v_add_f32 v{Q}, v{Q}, v{Q+1}"]
        for t in range(2):
            S, Q = V_LN + 4 * t, V_LN + 4 * t + 2
            L += [f"v_permlane32_swap_b32 v{S}, v{Q}"]
        for t in range(2):
            S, Q = V_LN + 4 * t, V_LN + 4 * t + 2
            L += [f"v_add_f32 v{S}, v{S}, v{Q}"]
        for t in range(2):
            S, Q = V_LN + 4 * t, V_LN + 4 * t + 2
            L += [f"v_mov_b32 v{Q}, v{S}"]
        for t in range(2):
            S, Q = V_LN + 4 * t, V_LN + 4 * t + 2
            L += [f"v_permlane32_swap_b32 v{S}, v{Q}"]
        stages = [
            lambda S, Q: f"v_mul_f32 v{S}, {f32(1/96)}, v{S}",
            lambda S, Q: f"v_mul_f32 v{Q}, {f32(1/96)}, v{Q}",
            lambda S, Q: f"v_fma_f32 v{Q}, -v{S}, v{S}, v{Q}",
            lambda S, Q: f"v_max_f32 v{Q}, 0, v{Q}",
            lambda S, Q: f"v_add_f32 v{Q}, {f32(1e-5)}, v{Q}",
            lambda S, Q: f"v_rsq_f32 v{Q}, v{Q}",
            lambda S, Q: f"v_mul_f32 v{Q}, {f32(CS) if S != V_LN else 's%d' % S_SCALE}, v{Q}",
            lambda S, Q: f"v_mul_f32_e64 v{S}, -v{S}, v{Q}",
        ]
        for st in stages:
            for t in range(2):
                L.append(st(V_LN + 4 * t, V_LN + 4 * t + 2))
        ops = [Op(x, stream="VL") for x in L]
        for t in range(2):
            S, Q = V_LN + 4 * t, V_LN + 4 * t + 2
            for k in range(24):
                y = v(V_Y + 48 * t + 2 * k, 2)
                ops.append(Op(f"v_pk_fma_f32 {y}, {y}, {v(Q,2)}, {v(S,2)} op_sel_hi:[1,0,0]", stream="VL"))
        n = 0
        pend = []
        for t in range(2):
            for k in range(24):
                tmp = V_LN + 8 + (n % 8); n += 1
                ops.append(Op(f"v_cvt_pk_bf16_f32 v{tmp}, v{V_Y + 48*t + 2*k}, v{V_Y + 48*t + 2*k + 1}", stream="VL"))
                pend.append(Op(f"v_accvgpr_write_b32 a{A_LN(p, t) + k}, v{tmp}", stream="VL"))
                if len(pend) > 2: ops.append(pend.pop(0))
        return ops + pend

    def w_read(self, addr, buf, stream, tr=()):
        b, off = self.frag_base(addr)
        return Op(f"ds_read_b128 {a(buf,4)}, v{b} offset:{off}", stream=stream, tr=tr), buf

    def chain(self, acc, A, B, E=V_E, n=8):
        CV = [f"v_cvt_pk_f16_f32 v{A+i}, v{acc+2*i}, v{acc+2*i+1}" for i in range(n)]
        T = [f"v_pk_fma_f16 v{B+i}, v{A+i}, v{A+i}, s{S_K16}" for i in range(n)]
        Z = [f"v_pk_mul_f16 v{B+i}, v{A+i}, v{B+i}" for i in range(n)]
        hi = "dst_sel:WORD_1 dst_unused:UNUSED_PRESERVE src0_sel:WORD_1"
        def tr(op):
            l = []
            for i in range(n + 2):
                if i < n: l.append(f"{op} v{E+i}, v{B+i}")
                if i >= 2: l.append(f"{op}_sdwa v{E+i-2}, v{B+i-2} {hi}")
            return l
        D = [f"v_pk_add_f16 v{B+i}, v{E+i}, 1.0 op_sel_hi:[1,0]" for i in range(n)]
        Y = [f"v_pk_mul_f16 v{A+i}, v{A+i}, v{E+i}" for i in range(n)]
        head = []
        for i in range(n + 2):
            if i < n: head.append(CV[i])
            if 1 <= i < n + 1: head.append(T[i-1])
            if i >= 2: head.append(Z[i-2])
        return head, tr("v_exp_f16"), D, tr("v_rcp_f16"), Y

    def table_ops(self, acc, n, mn):
        ad = [Op(f"v_mad_u32_u16 v{acc+i}, v{acc+i}, 2, s{S_TBASE} op_sel:[1,0,0,0]", stream="VN") for i in range(n)]
        ga = [Op(f"{mn(i)} v{acc+i}, v{acc+i}", stream="DG", kind="dsg") for i in range(n)]
        return ad, ga

    def act_stream(self, N, bufs, g1, g2):
        ops = []
        O = lambda l, st: [Op(x, stream=st) for x in l]
        AD = lambda k: self.table_ops(bufs(k)[0], 16, lambda i: "ds_read_u16_d16_hi")
        ch = {}
        def CH(k):
            if k not in ch:
                b = bufs(k); ch[k] = self.chain(b[1], b[2], b[3])
            return ch[k]
        ops += g1(0, 0) + g1(0, 1)
        ad, ga = AD(0)
        ga[0].tr.add(("tabok",))
        ops += ad + ga + O(CH(0)[0], "VN") + g1(1, 0) + g2(0, 0)
        for k in range(N):
            head, E, D, R, Y = CH(k)
            last = k + 1 == N
            if not last: ops += g1(k + 1, 1)
            ops += O(E, "VT")
            D = O(D, "VN")
            if not last:
                ad, ga = AD(k + 1)
                lead = self.cfg.ad_lead
                ops += ad[:lead]; ad = ad[lead:]
                for i in range(8):
                    ops += ad[len(ad) * i // 8: len(ad) * (i + 1) // 8] + [D[i]]
                ops += ga
            else:
                ops += D
            if k + 2 < N: ops += g1(k + 2, 0)
            ops += O(R, "VT")
            Y = O(Y, "VN")
            if not last:
                h2 = O(CH(k + 1)[0], "VN")
                ops += h2[:8]
                for i in range(8): ops += h2[8 + 2 * i: 10 + 2 * i] + [Y[i]]
            else:
                ops += Y
            if not last: ops += g2(k + 1, 0)
            ops += g2(k, 1)
        return ops

    def phase1(self):
        c = self.cfg
        self.cvb = self.cva = 0
        ops = []
        bar = lambda name, tr: Op("s_barrier", stream="X", tr=tr, tw=[name])
        adv = lambda: [Op(f"v_add_u32 v{V_DMA+k}, {8 * 98304}, v{V_DMA+k}", stream="VL") for k in range(6)]
        ops.append(Op("s_nop 0", stream="X", tw=[("bar", 0), ("dma", 0), ("dma", 1), ("dma", 2)]))
        landed = lambda f: max([d for q, d in self.em.vmq if f(q)] + [0])
        prep = self.w1_prep()
        prep[0].earliest = landed(lambda q: ("v", 62 + 32 * 2 + 28) in q.defs)
        ops += prep
        def unit(q):
            r = []
            if q > 0:
                r.append(bar(("bar", q), [("rd", q - 1), ("dma", q)] + ([("max",)] if q == 2 else [])))
                if q < 3: r[-1].earliest = landed(lambda o: ("dma", q) in o.tw)
                else: r[-1].tr.add(("pace", 12 * (q // 3 - 1) + c.upace[q % 3]))
                if q + 2 < 12 and q != 3:
                    if (q + 2) % 3 == 0: r += adv()
                    r += self.dma_ops(q + 2, [("bar", q)])
            if q == 2: r += self.delta_ops()
            r += self.conv_unit(q, ("bar", q))
            st = self.ln_stats(q // 3, q % 3)
            if q == 3: st[0].tr.add(("tabok",))
            r += st
            if q == 2:
                r.append(bar(("bar", "2b"), [("rd", 2), ("w1",)]))
                r += self.dma_ops(5, [("bar", "2b")])
            if q % 3 == 2: r += self.ln_finish(q // 3)
            if q == 2:
                r[-1].tw.add(("ln0",))
                chk = Op(f"s_cmp_lg_u32 s{S_DELTA}, 0", stream="X", tr=[("ln0",)], tw=[("tabok",)])
                chk.group = [Op("s_cbranch_scc1 L_redo"), Op("L_back:")]
                r.append(chk)
            return r
        for q in range(3): ops += unit(q)
        def bufs(k):
            A = V_A + 8 * (k % 2) if k < 36 else V_Y + 8 * (k - 36)
            return (V_POOL + 16 * (k % 2), V_POOL + 32, A, V_B + 8 * (k % 2))
        self.wn = 0
        frag = {}
        extra = {}
        def g1(k, t):
            p, ch = divmod(k, 12); r = []
            if (k, t) in extra: r += extra[(k, t)]()
            acc = bufs(k)[t]
            for ks in range(6):
                if t == 0:
                    op, frag[ks] = self.w_read(w1_addr(6 * ch + ks), A_W + 4 * (self.wn % 12), "D1", [("bar", "2b")] if k == 0 else ()); self.wn += 1
                    r.append(op)
                cc = "0" if ks == 0 else v(acc, 16)
                ln, w = a(A_LN(p, t) + 4 * ks, 4), a(frag[ks], 4)
                r.append(Op(f"v_mfma_f32_32x32x16_bf16 {v(acc,16)}, {ln if t == 0 else w}, {w if t == 0 else ln}, {cc}", stream="M1"))
            if t == 1: r[-1].tw.add(("pace", k))
            return r
        def g2(k, t):
            p, ch = divmod(k, 12)
            sq = V_SQ + 2 * ch; b = bufs(k)
            if t == 0:
                return [Op(f"v_pk_add_f32 {v(sq,2)}, {v(sq,2)}, {v(b[0]+2*i,2)}", stream="VW") for i in reversed(range(8))]
            r = []
            if p < 3:
                r.append(Op(f"s_add_u32 s{S_HT}, s{S_H}, {(12 * p + ch) * 8192}", stream="DH"))
                for ks in range(2):
                    r.append(Op(f"buffer_store_dwordx4 {v(b[2] + 4*ks,4)}, v{V_LANE16}, {srd(S_WS)}, s{S_HT} offen offset:{1024 * ks} {c.hpol.split(',')[p % len(c.hpol.split(','))]}", stream="DH"))
            X = bufs(k + 1)[0]
            for ks in range(2):
                r.append(Op(f"v_mfma_f32_32x32x16_f16 {v(X,16)}, {v(b[2] + 4*ks,4)}, {a(A_TI + 4*ks,4)}, {'0' if ks == 0 else v(X,16)}", stream="MT"))
            r += [Op(f"v_pk_fma_f32 {v(sq,2)}, {v(X+2*i,2)}, {v(X+2*i,2)}, {v(sq,2)}", stream="VW") for i in range(8)]
            return r
        for p in range(3):
            extra[(12 * p + 11, 1)] = (lambda p=p: unit(3 * p + 3) + unit(3 * p + 4) + unit(3 * p + 5))
        def tail():
            r = [bar(("bar", 12), [("rd", 11)])]
            for k in range(18):
                r.append(Op(f"s_add_u32 s{S_T0}, s{S_T1}, {4096 * k}", stream="DX", tr=[("bar", 12)]))
                if k == 5: r.append(Op(f"s_mov_b32 m0, s{S_W2M}", stream="DX"))
                else: r.append(Op(f"s_add_u32 m0, s{S_T0}, {71680 if k < 5 else 100096 - 21 * 1024}", stream="DX"))
                r.append(Op(f"buffer_load_dwordx4 v{V_LANE16}, {srd(S_W2)}, s{S_T0} offen lds", stream="DX", tw=[("w2raw",)], lat=c.dma_lat))
            r.append(Op(f"buffer_load_dword v{V_FLAG}, v{V_CB}, {srd(S_DBG)}, 0 offen sc1", stream="DX", lat=c.dma_lat))
            r.append(Op(f"ds_write_b64 v{V_CB+1}, {a(A_ZERO,2)}", stream="DX", tr=[("bar", 12)], tw=[("w2raw",)]))
            r.append(Op(f"ds_write_b32 v{V_CB+2}, v{V_BB}", stream="DX", tr=[("bar", 12)], tw=[("w2raw",)]))
            return r
        def tail_pre():
            L = [f"s_lshl_b32 s{S_T1}, s{S_WAVE}, 10",
                 f"v_mov_b32 v{V_CB}, 0",
                 f"v_min_u32 v{V_CB+1}, 239, v0",
                 f"v_lshlrev_b32 v{V_CB+1}, 3, v{V_CB+1}",
                 f"v_add_u32 v{V_CB+1}, {SUMS}, v{V_CB+1}",
                 f"v_lshrrev_b32 v{V_CB+2}, 2, v{V_LANE16}",
                 f"v_min_u32 v{V_CB+2}, 188, v{V_CB+2}",
                 f"s_mul_i32 s{S_T3}, s{S_WAVE}, 192",
                 f"s_add_u32 s{S_T3}, s{S_T3}, {BVEC}",
                 f"v_add_u32 v{V_CB+2}, s{S_T3}, v{V_CB+2}"]
            return [Op(x, stream="VL") for x in L]
        extra[(37, 0)] = lambda: tail_pre() + tail()
        extra[(46, 0)] = lambda: [bar(("bar", 13), [("w2raw",), ("pace", 44)])]
        ops += self.act_stream(48, bufs, g1, g2)
        return self.run(ops, ["MT", "M1", "MC"], ["VW", "VL", "VP", "VN", "VT"], ["D1", "DG", "DC", "DH", "DP", "DX"], ["X"], "phase1", c.gap1)

    def run(self, ops, ms, vs, ds, xs, name, gap):
        c = self.cfg
        if c.nosched:
            for o in ops: self.em.emit(o)
            return
        tr = []
        m = self.em.mach
        t0, f0, n0 = m.t, m.fetch_stall, len(self.em.out)
        step = len(ops) // c.fine if c.stamps and c.fine else 0
        def hook(i):
            last = self.em.out[-1]
            if c.stamps and c.chunk == name and getattr(last, "note", None) != "st" and any(t[0] == "pace" and t[-1] != 0 or t == ("pace", 0) for t in last.tw):
                last.note = "st"; self.mt.append(m.t); self.cstamp()
            if step and i and i % step == 0 and i // step < c.fine: self.stamp()
            if c.prefetch and c.jit and self.em.out[-1].kind == "m" and self.pf_next - (m.addr - self.pc_addr) < c.jit:
                self.code_prefetch()
        schedule(self.em, ops, ms, vs, ds, xs, trace=tr, dlimit=c.dlimit, gap=gap, hook=hook, drop=set(c.abl.split(",")))
        st = {}
        for now, d, s, txt in tr: st[s] = st.get(s, 0) + d
        new = self.em.out[n0:]
        print(f"; {name}: {len(new)} instrs, model {m.t - t0} cycles, issue sum {sum(o.cost for o in new)}, fetch stalls {m.fetch_stall - f0}, "
              f"waits {sum(o.kind == 'wait' for o in new)}, nops {sum(o.cost // 4 for o in new if o.kind == 'nop')}, stalls {st}", file=sys.stderr)
        if c.trace:
            with open(f"trace_{name}.txt", "w") as f:
                prev = t0
                for o in new:
                    if o.kind == 'label': continue
                    gap = o.t_issue - prev
                    f.write(f"{o.t_issue - t0:6d} {'+%d' % gap if gap > 0 else '':>5s} {o.stream or '':3s} {o.text}\n")
                    prev = o.t_issue + o.cost

    def h_loads(self, k, stream="DH"):
        p, ch = 3 - k // 12, k % 12
        r = []
        r.append(Op(f"s_add_u32 s{S_HT}, s{S_H}, {(12 * p + ch) * 8192}", stream=stream))
        for ks in range(2):
            r.append(Op(f"buffer_load_dwordx4 {a(A_H + 8 * ((k - 12) % 10) + 4*ks,4)}, v{V_LANE16}, {srd(S_WS)}, s{S_HT} offen offset:{1024 * ks} {self.cfg.hpol2.split(',')[p % len(self.cfg.hpol2.split(','))]}",
                        stream=stream, lat=self.cfg.x_lat))
        return r

    def x_loads(self, n):
        p, k = 3 - n // 6, n % 6; blk, t = divmod(k, 2)
        return [Op(f"buffer_load_dwordx4 {a(A_X + 8 * (n % 2) + 4*q,4)}, v{V_CA}, {srd(S_X)}, s{S_ROW + 2*p + t} offen offset:{64*blk + 16*q} {self.cfg.xpol2}",
                   stream="DX", lat=self.cfg.x_lat) for q in range(2)]

    def switch(self):
        c = self.cfg
        s = self.seq
        W2R, BS, ACC = 62, 134, 22
        self.stamp()
        for ch in range(12): s(f"v_add_f32 v{V_SQ + 2*ch}, v{V_SQ + 2*ch}, v{V_SQ + 2*ch + 1}")
        s(f"v_lshrrev_b32 v46, 2, v{V_LANE16}\nv_add_u32 v46, {SUMS}, v46")
        for i in range(6): s(f"v_permlane32_swap_b32 v{V_SQ + 4*i}, v{V_SQ + 4*i + 2}")
        for i in range(6): s(f"v_add_f32 v{V_SQ + 4*i}, v{V_SQ + 4*i}, v{V_SQ + 4*i + 2}")
        for i in range(6): s(f"ds_add_f32 v46, v{V_SQ + 4*i} offset:{256 * i}")
        s(f"""
            v_lshlrev_b32 v58, 2, v0
            v_add_u32 v48, {SUMS}, v58
            s_cmp_ge_u32 s{S_WAVE}, 2
            s_cselect_b32 s{S_T1}, 0x7ff00000, 0
            v_add_u32 v59, s{S_T1}, v58
            s_waitcnt vmcnt(0) lgkmcnt(0)
            s_barrier
            ds_read_b32 v60, v48
            ds_read_b32 v61, v48 offset:1024
            v_readfirstlane_b32 s{S_T0}, v{V_FLAG}
            s_mov_b32 s{S_CNT}, 0
            s_cmp_ge_u32 s{S_T0}, 8
            s_cbranch_scc1 L_flag_ok
            L_flag_poll:
            buffer_load_dword v{V_FLAG}, v{V_CB}, {srd(S_DBG)}, 0 offen sc1
            s_add_u32 s{S_CNT}, s{S_CNT}, 1
            s_waitcnt vmcnt(0)
            v_readfirstlane_b32 s{S_T0}, v{V_FLAG}
            s_cmp_gt_u32 s{S_CNT}, 0x40000
            s_cbranch_scc1 L_flag_ok
            s_cmp_ge_u32 s{S_T0}, 8
            s_cbranch_scc0 L_flag_poll
            L_flag_ok:
            s_lshl_b32 s{S_T0}, s{S_SHARD}, 11
            s_waitcnt vmcnt(0) lgkmcnt(0)
            buffer_atomic_add_f32 v60, v58, {srd(S_WS)}, s{S_T0} offen
            buffer_atomic_add_f32 v61, v59, {srd(S_WS)}, s{S_T0} offen offset:1024
            s_mov_b64 s[{S_MODE}:{S_MODE+1}], -1
        """)
        if c.prefetch:
            while self.pf_next < self.em.mach.addr + c.jit + 8192: self.code_prefetch()
        self.call_table()
        s(f"""
            v_lshrrev_b32 v46, 4, v{V_LANE16}
            v_lshrrev_b32 v47, 5, v46
            v_bfe_u32 v48, v46, 2, 2
            v_lshl_add_u32 v48, v47, 2, v48
            v_mul_u32_u24 v48, 6, v48
            v_bfe_u32 v49, v46, 4, 1
            v_lshlrev_b32 v49, 4, v49
            v_and_b32 v50, 1, v46
            v_lshl_add_u32 v49, v50, 3, v49
            v_bfe_u32 v50, v46, 1, 1
            v_lshl_add_u32 v49, v50, 2, v49
            v_lshlrev_b32 v49, 1, v49
            s_mul_i32 s{S_T0}, s{S_WAVE}, 3
            s_cmp_ge_u32 s{S_WAVE}, 2
            s_cselect_b32 s{S_T1}, 186, 0
            s_add_u32 s{S_T0}, s{S_T0}, s{S_T1}
            v_add_u32 v48, s{S_T0}, v48
            v_mov_b32 v51, {100096 - 112 * 192}
            v_mov_b32 v52, 71680
        """)
        for cl in range(3):
            for ks in range(2):
                for jh in range(2):
                    t = 53 + 2 * jh
                    s(f"""
                        v_add_u32 v{t}, {cl + 6 * (16 * ks + 8 * jh)}, v48
                        v_cmp_gt_u32 vcc, 112, v{t}
                        v_mul_u32_u24 v{t}, 192, v{t}
                        v_add_u32 v{t}, v{t}, v49
                        v_cndmask_b32 v{t+1}, v51, v52, vcc
                        v_add_u32 v{t}, v{t}, v{t+1}
                    """)
                    for blk in range(3):
                        f = (cl * 2 + ks) * 3 + blk
                        s(f"ds_read_b64_tr_b16 {v(W2R + 4*f + 2*jh, 2)}, v{t} offset:{64 * blk}")
        s(f"""
            s_mul_i32 s{S_T0}, s{S_WAVE}, 192
            v_lshlrev_b32 v50, 3, v47
            v_add_u32 v50, s{S_T0}, v50
            v_add_u32 v51, {SUMS}, v50
            v_add_u32 v50, {BVEC}, v50
            v_and_b32 v53, 31, v46
            v_mul_u32_u24 v54, 192, v53
            v_lshl_add_u32 v{V_CA}, v47, 5, v54
            v_lshl_add_u32 v{V_CB}, v47, 4, v54
        """)
        for cl in range(3):
            for ks in range(2):
                for jh in range(2):
                    s(f"ds_read_b64 {v(BS + 4*(cl*2+ks) + 2*jh, 2)}, v50 offset:{2 * (32*cl + 16*ks + 8*jh)}")
        s(f"""
            s_waitcnt vmcnt(0)
            s_barrier
            s_cmp_lg_u32 s{S_WAVE}, 0
            s_cbranch_scc1 L_arrived
            v_lshlrev_b32 v54, 7, v{V_LANE16}
            s_lshl_b32 s{S_T0}, s{S_SHARD}, 8
            s_add_u32 s{S_T0}, s{S_T0}, 0x10000
            v_mov_b32 v55, 1
            s_mov_b64 exec, 0xff
            buffer_atomic_add v55, v54, {srd(S_WS)}, s{S_T0} offen
            s_mov_b64 exec, -1
            L_arrived:
        """)
        self.stamp()
        for blk in range(3):
            for g in range(6):
                s(f"v_mfma_f32_32x32x16_bf16 {v(ACC,16)}, {v(BS + 4*g,4)}, {v(W2R + 4*(3*g+blk),4)}, {'0' if g == 0 else v(ACC,16)}")
            s(f"v_mov_b32 v{56 + blk}, v{ACC}")
        s(f"""
            v_lshlrev_b32 v52, 2, v53
            v_add_u32 v52, {BIASV}, v52
            s_mov_b32 exec_hi, 0
            ds_add_f32 v52, v56
            ds_add_f32 v52, v57 offset:128
            ds_add_f32 v52, v58 offset:256
            s_mov_b64 exec, -1
        """)
        for r in range(72):
            s(f"""
                v_lshlrev_b32 v{54 + 2*(r&1)}, 16, v{W2R + r}
                v_and_b32 v{55 + 2*(r&1)}, 0xffff0000, v{W2R + r}
                v_cvt_pk_f16_f32 v{W2R + r}, v{54 + 2*(r&1)}, v{55 + 2*(r&1)}
            """)
        s(f"""
            v_bfe_u32 v54, v53, 2, 1
            v_lshrrev_b32 v55, 3, v53
            v_cmp_eq_u32 vcc, v54, v47
            v_mov_b32 v54, 7
            v_cndmask_b32 v55, v54, v55, vcc
            v_mov_b32 v56, 0x3f80
        """)
        for g in range(4):
            s(f"""
                v_cmp_eq_u32 vcc, {g}, v55
                v_cndmask_b32 v57, 0, v56, vcc
                v_accvgpr_write_b32 a{A_ID + g}, v57
            """)
        s(f"""
            v_mov_b32 v56, 0x3f803f80
            v_cmp_eq_u32 vcc, 0, v47
            v_cndmask_b32 v57, 0, v56, vcc
            v_accvgpr_write_b32 a{A_ONES}, v57
            v_accvgpr_write_b32 a{A_ONES+1}, 0
            v_accvgpr_write_b32 a{A_ONES+2}, 0
            v_accvgpr_write_b32 a{A_ONES+3}, 0
        """)
        s(f"""
            s_cmp_lg_u32 s{S_WAVE}, 0
            s_cbranch_scc1 L_released
            s_lshr_b32 s{S_T0}, s2, 3
            s_and_b32 s{S_T0}, s{S_T0}, 7
            s_lshl_b32 s{S_T0}, s{S_T0}, 11
            s_add_u32 s{S_T0}, s{S_T0}, 0x10000
            v_and_b32 v54, 7, v46
            v_lshlrev_b32 v54, 8, v54
            s_mov_b32 s{S_CNT}, 0
            L_poll:
            buffer_load_dword v55, v54, {srd(S_WS)}, s{S_T0} offen sc1
            s_add_u32 s{S_CNT}, s{S_CNT}, 1
            s_waitcnt vmcnt(0)
            v_cmp_gt_u32 vcc, 32, v55
            s_cmp_gt_u32 s{S_CNT}, 0x40000
            s_cbranch_scc1 L_released
            s_cbranch_vccnz L_poll
            L_released:
            s_waitcnt vmcnt(0) lgkmcnt(0)
            s_barrier
        """)
        self.stamp()
        T = ACC
        s(f"""
            v_min_u32 v53, 47, v46
            v_lshlrev_b32 v53, 3, v53
            s_mul_i32 s{S_T0}, s{S_WAVE}, 384
            v_add_u32 v53, s{S_T0}, v53
        """)
        for j in range(8):
            if j % 2 == 0: s(f"s_movk_i32 s{S_T1}, {2048 * j}")
            s(f"buffer_load_dwordx2 {v(T + 2*j, 2)}, v53, {srd(S_WS)}, s{S_T1} offen offset:{2048 * (j & 1)} sc1")
        for n in range(2):
            for o in self.x_loads(n): self.em.emit(o)
        for k in range(12, 12 + c.hpre):
            for o in self.h_loads(k): self.em.emit(o)
        for blk in range(3): s(f"ds_read_b32 v{56 + blk}, v52 offset:{128 * blk}")
        for blk in range(3):
            s(f"""
                v_cvt_pk_bf16_f32 v59, v{56 + blk}, v{56 + blk}
                v_lshlrev_b32 v59, 16, v59
                v_sub_f32 v59, v{56 + blk}, v59
                v_cvt_pk_bf16_f32 v59, v{56 + blk}, v59
                v_accvgpr_write_b32 a{A_BIAS + 2*blk}, v59
                v_accvgpr_write_b32 a{A_BIAS + 2*blk + 1}, 0
            """)
        for j in range(1, 8): s(f"v_pk_add_f32 {v(T,2)}, {v(T,2)}, {v(T + 2*j, 2)}")
        s(f"""
            v_mov_b32 v56, {f32(1e-6)}
            v_fmac_f32 v56, {f32(1 / (CS * CS))}, v{T}
            v_mov_b32 v57, {f32(1e-6)}
            v_fmac_f32 v57, {f32(1 / (CS * CS))}, v{T+1}
            v_sqrt_f32 v56, v56
            v_sqrt_f32 v57, v57
            v_cmp_gt_u32 vcc, 48, v46
            v_add_f32 v58, v56, v57
            v_cndmask_b32 v58, 0, v58, vcc
            v_add_f32_dpp v58, v58, v58 row_shr:1 row_mask:0xf bank_mask:0xf bound_ctrl:1
            v_add_f32_dpp v58, v58, v58 row_shr:2 row_mask:0xf bank_mask:0xf bound_ctrl:1
            v_add_f32_dpp v58, v58, v58 row_shr:4 row_mask:0xf bank_mask:0xf bound_ctrl:1
            v_add_f32_dpp v58, v58, v58 row_shr:8 row_mask:0xf bank_mask:0xf bound_ctrl:1
            s_nop 1
            v_readlane_b32 s{S_T0}, v58, 15
            v_readlane_b32 s{S_T1}, v58, 31
            v_readlane_b32 s{S_T2}, v58, 47
            v_mov_b32 v58, s{S_T0}
            v_add_f32 v58, s{S_T1}, v58
            v_add_f32 v58, s{S_T2}, v58
            s_lshl_b32 s{S_T0}, s{S_WAVE}, 2
            s_add_u32 s{S_T0}, s{S_T0}, {MEANP}
            v_mov_b32 v59, s{S_T0}
            v_mov_b32 v60, {MEANP}
            ds_write_b32 v59, v58
            s_waitcnt lgkmcnt(0)
            s_barrier
            ds_read_b128 {v(T,4)}, v60
            v_min_u32 v53, 47, v46
            v_lshlrev_b32 v53, 2, v53
            s_mul_i32 s{S_T0}, s{S_WAVE}, 192
            s_add_u32 s{S_T0}, s{S_T0}, {SUMS}
            v_add_u32 v53, s{S_T0}, v53
            v_mul_f32 v56, v56, v{V_G}
            v_mul_f32 v57, v57, v{V_G+1}
            v_add_f32 v{T}, v{T}, v{T+1}
            v_add_f32 v{T+2}, v{T+2}, v{T+3}
            v_add_f32 v{T}, v{T}, v{T+2}
            v_mov_b32 v58, {f32(1e-6)}
            v_fmac_f32 v58, {f32(1 / 384)}, v{T}
            v_rcp_f32 v58, v58
            s_mul_i32 s{S_T0}, s{S_WAVE}, 18
            v_fma_f32 v56, v56, v58, 1.0
            v_fma_f32 v57, v57, v58, 1.0
            v_mul_f32 v56, {f32(1 / CS)}, v56
            v_mul_f32 v57, {f32(1 / CS)}, v57
            v_cvt_pk_f16_f32 v56, v56, v57
            ds_write_b32 v53, v56
            s_add_u32 s{S_T0}, s{S_T0}, 70
            s_lshl_b32 s{S_T0}, s{S_T0}, 10
            v_add_u32 v54, s{S_T0}, v{V_LANE16}
            s_cmp_ge_u32 s{S_WAVE}, 1
            s_cselect_b32 s{S_T1}, {100096 - 21 * 1024 - 71680}, 0
            v_add_u32 v55, s{S_T1}, v54
            s_cmp_ge_u32 s{S_WAVE}, 2
            s_cselect_b32 s{S_T1}, {100096 - 21 * 1024 - 71680}, 0
            v_add_u32 v54, s{S_T1}, v54
            s_waitcnt lgkmcnt(0)
        """)
        for cl in range(3):
            for ks in range(2):
                for jh in range(2):
                    s(f"ds_read_b64 {v(BS + 4*(cl*2+ks) + 2*jh, 2)}, v51 offset:{2 * (32*cl + 16*ks + 8*jh)}")
        for f in range(18):
            for t in range(4):
                s(f"v_pk_mul_f16 v{W2R + 4*f + t}, v{W2R + 4*f + t}, v{BS + 4*(f//3) + t}")
            if f: s(f"ds_write_b128 v{54 if f - 1 < 3 else 55}, {v(W2R + 4*(f-1), 4)} offset:{1024 * (f - 1)}")
        s(f"ds_write_b128 v55, {v(W2R + 4*17, 4)} offset:{1024 * 17}")
        s(f"s_xor_b32 s{S_UNSC}, s{S_UNSC}, 0x80000000\ns_waitcnt lgkmcnt(0)\ns_barrier")
        self.stamp()

    def phase2(self):
        c = self.cfg
        POOL, YL, ACC2, STAGE = [8, 24], [40, 48], 62, 160
        nc = c.cmix
        O = lambda l, st: [Op(x, stream=st) for x in l]
        cnt = dict(w1=0, w2=0)
        W1B = lambda k: [A_W + 4 * i for i in range(5)] + ([72, 76, 80] if k >= 14 else [])
        W2B = lambda k: [A_W + 20 + 4 * i for i in range(7)] + ([84, 88, 92] if k >= 14 else [])
        pend = []
        ops = []
        def nextbuf(key, l):
            cnt[key] = (cnt[key] + 1) % len(l); return l[cnt[key]]
        def g1(k):
            p, ch = 3 - k // 12, k % 12; r = []
            acc = POOL[k % 2]
            for ks in range(6):
                op, f = self.w_read(w1_addr(6 * ch + ks), nextbuf("w1", W1B(k)), "D1"); r.append(op)
                r.append(Op(f"v_mfma_f32_32x32x16_bf16 {v(acc,16)}, {a(f,4)}, {a(A_LN(p, 0) + 4*ks,4)}, {'0' if ks == 0 else v(acc,16)}", stream="M"))
            n = 16 - 2 * nc
            ad, ga = self.table_ops(acc, n, lambda i: "ds_read_u16_d16_hi" if i & 1 else "ds_read_u16")
            r += ad + ga
            if nc:
                r += O([f"v_mul_f32 v{acc+i}, s{S_UNSC}, v{acc+i}" for i in range(n, 16)], "VN")
                for part in self.chain(acc + n, YL[k % 2] + 8 - nc, 56, 59, nc): r += O(part, "VN")
            return r
        f2 = {}
        def g2(k, t):
            pi, ch = divmod(k, 12); p = 3 - pi; r = []
            base = ACC2 + 48 * t
            if t == 0:
                acc, y = POOL[k % 2], YL[k % 2]
                r += O([f"v_or_b32 v{y+i}, v{acc+2*i}, v{acc+2*i+1}" for i in range(8 - nc)], "VO")
                B = lambda ks: v(y + 4 * ks, 4)
            elif pi == 0: B = lambda ks: v(V_Y + 8 * ch + 4 * ks, 4)
            else: B = lambda ks: a(A_H + 8 * ((k - 12) % 10) + 4 * ks, 4)
            if ch == 0:
                for blk in range(3):
                    r.append(Op(f"v_mfma_f32_32x32x16_bf16 {v(base + 16*blk,16)}, {a(A_BIAS + 2*blk,4)}, {a(A_ONES,4)}, 0", stream="M"))
            for ks in range(2):
                for blk in range(3):
                    if t == 1:
                        op, f2[(ks, blk)] = self.w_read(w2_addr((ch * 2 + ks) * 3 + blk), nextbuf("w2", W2B(k)), "D2"); r.append(op)
                    acc2 = v(base + 16 * blk, 16)
                    r.append(Op(f"v_mfma_f32_32x32x16_f16 {acc2}, {a(f2[(ks, blk)],4)}, {B(ks)}, {acc2}", stream="M"))
            first = next(o for o in r if o.kind == "m")
            first.tw.add(("pace", k, t))
            if t == 1:
                kk = k + c.hahead if k + c.hahead >= 12 + c.hpre else None
                if kk is not None and kk < 48:
                    l = self.h_loads(kk); l[0].tr.add(("pace", k, t)); r += l
            if ch % 4 == 1 + t:
                n = 6 * pi + 2 * (ch // 4) + t
                r.append(Op(f"v_smfmac_f32_32x32x32_bf16 {v(base + 16*(ch//4),16)}, {a(A_ID,4)}, {a(A_X + 8 * (n % 2),8)}, v{V_IDX}", stream="M"))
                if n + 2 < 24: r += self.x_loads(n + 2)
            if pend and (t == 0 and ch < 11 or (ch, t) == (1, 1)):
                o = pend.pop(0); o.tr.add(("pace", k, t)); r.append(o)
            if ch == 11:
                assert len(pend) == (0 if t == 1 or pi == 3 else 6)
                dst = STAGE + 24 * t
                for j in range(24):
                    r.append(Op(f"v_cvt_pk_bf16_f32 v{dst + j}, v{base + 2*j}, v{base + 2*j + 1}", stream="VE"))
                    if j % 4 == 3:
                        o = Op(f"buffer_store_dwordx4 {v(dst + j - 3, 4)}, v{V_CB}, {srd(S_OUT)}, s{S_ROW + 2*p + t} offen offset:{8 * (j - 3)} {c.opol}", stream="DS")
                        (r if pi == 3 else pend).append(o)
            return r
        ops += g1(0) + g1(1)
        for k in range(48):
            ops += g2(k, 1) + g2(k, 0)
            if k + 2 < 48: ops += g1(k + 2)
        self.run(ops, ["M"], ["VO", "VE", "VN"], ["D1", "D2", "DG", "DH", "DS", "DX"], [], "phase2", c.gap2)

    def dump_ln(self):
        s = self.seq
        s(f"""
            s_lshl_b32 s{S_T0}, s2, 2
            s_add_u32 s{S_T0}, s{S_T0}, s{S_WAVE}
            s_mul_i32 s{S_T0}, s{S_T0}, {192 * 256}
            s_add_u32 s{S_T0}, s{S_T0}, 0x100000
            v_lshrrev_b32 v46, 2, v{V_LANE16}
        """)
        for r in range(192):
            s(f"buffer_store_dword a{r}, v46, {srd(S_WS)}, s{S_T0} offen offset:{(r % 16) * 256}")
            if r % 16 == 15: s(f"s_add_u32 s{S_T0}, s{S_T0}, 4096\ns_waitcnt vmcnt(0)")

    def dump_stamps(self):
        s = self.seq
        s(f"""
            s_lshl_b32 s{S_T0}, s2, 2
            s_add_u32 s{S_T0}, s{S_T0}, s{S_WAVE}
            s_lshl_b32 s{S_T0}, s{S_T0}, 8
            s_add_u32 s{S_T0}, s{S_T0}, 0x20000
            v_lshrrev_b32 v46, 2, v{V_LANE16}
            buffer_store_dword v{V_STAMP}, v46, {srd(S_WS)}, s{S_T0} offen
        """)

    def build(self):
        c = self.cfg
        self.prologue()
        self.phase1()
        self.switch()
        self.phase2()
        if c.stamps:
            self.stamp()
            self.seq("s_waitcnt vmcnt(0)")
            self.stamp()
            self.dump_stamps()
        self.seq("L_last:\ns_endpgm")
        seq, t = self.em.out, self.em.mach.t
        if c.loop2:
            idx = [i for i, o in enumerate(seq) if o.mn == "v_mfma_f32_32x32x16_bf16" and o.stream == "M1"]
            idx = idx[len(idx) // 2:]
            i1, i2 = idx[144], idx[288]
            self.nstamp -= 2
            self.em = Emitter(); self.stamp(); pre = self.em.out
            self.em = Emitter()
            self.stamp(); self.seq("s_waitcnt vmcnt(0)"); self.stamp(); self.dump_stamps(); self.seq("L_last:\ns_endpgm")
            pre += [Op(f"s_mov_b32 s{S_CNT}, 4")]
            while sum(o.nbytes for o in pre) % 32: pre.append(Op("s_nop 0"))
            post = [Op(f"s_sub_u32 s{S_CNT}, s{S_CNT}, 1"), Op(f"s_cmp_lg_u32 s{S_CNT}, 0"), Op("s_cbranch_scc1 L_loop2"), Op("s_nop 15")]
            seq = seq[:i1] + pre + [Op("L_loop2:")] + seq[i1:i2] + post + self.em.out
        if self.mt: print("; model deltas", [b - a for a, b in zip(self.mt, self.mt[1:])], file=sys.stderr)
        nb = sum(o.nbytes for o in seq)
        print(f"; total {len(seq)} instrs, {nb} bytes, model {t} cycles, waits {sum(o.kind == 'wait' for o in seq)}, nops {sum(o.cost // 4 for o in seq if o.kind == 'nop')}", file=sys.stderr)
        return seq, nb


HEADER = open("standalone__modern_conv_block_slak__vision.s.ref").read().split("; Override launch")[0]


def main():
    ap = argparse.ArgumentParser()
    ap.add_argument("-o", default="standalone__modern_conv_block_slak__vision.s")
    ap.add_argument("--cmix", type=int, default=2)
    ap.add_argument("--hpre", type=int, default=0)
    ap.add_argument("--hahead", type=int, default=10)
    ap.add_argument("--upace", type=lambda s: [int(x) for x in s.split(",")], default=[1, 4, 7])
    ap.add_argument("--hpol", default="")
    ap.add_argument("--hpol2", default="")
    ap.add_argument("--nosched", action="store_true")
    ap.add_argument("--trace", action="store_true")
    ap.add_argument("--abl", default="")
    ap.add_argument("--fine", type=int, default=0)
    ap.add_argument("--loop2", action="store_true")
    ap.add_argument("--ldslat", type=int, default=110)
    ap.add_argument("--mlat", type=int, default=56)
    ap.add_argument("--cover", type=int, default=0)
    ap.add_argument("--preread", default="")
    ap.add_argument("--jit", type=int, default=16384)
    ap.add_argument("--pf0", type=int, default=4)
    ap.add_argument("--chunk", default="")
    ap.add_argument("--dump", action="store_true")
    ap.add_argument("--stamps", action="store_true")
    ap.add_argument("--noprefetch", dest="prefetch", action="store_false")
    ap.add_argument("--xpol", default="")
    ap.add_argument("--xpol2", default="")
    ap.add_argument("--opol", default="")
    ap.add_argument("--gap1", type=int, default=40)
    ap.add_argument("--gap2", type=int, default=32)
    ap.add_argument("--ad_lead", type=int, default=6)
    ap.add_argument("--dlimit", type=int, default=3)
    ap.add_argument("--dma_lat", type=int, default=3500)
    ap.add_argument("--x_lat", type=int, default=2500)
    cfg = ap.parse_args()
    cfg.ws_bytes = WS_BYTES
    import asmlib
    asmlib.Machine.LDS_LAT = cfg.ldslat; asmlib.Machine.MLAT = cfg.mlat
    g = Gen(cfg)
    seq, nb = g.build()
    body = "\n".join(o.text for o in seq).replace("CODE_BYTES", str(nb - 0))
    txt = HEADER + f"""; @launch grid=(256,1,1) block=(256,1,1) lds={LDS_TOTAL}
.amdgcn_target "amdgcn-amd-amdhsa--gfx950"
.text
.globl {NAME}
.p2align 8
.type {NAME},@function
{NAME}:
{body}
.section .rodata,"a"
.p2align 6
.amdhsa_kernel {NAME}
  .amdhsa_next_free_vgpr 512
  .amdhsa_next_free_sgpr 102
  .amdhsa_accum_offset 256
  .amdhsa_group_segment_fixed_size 0
  .amdhsa_kernarg_size 72
  .amdhsa_user_sgpr_count 2
  .amdhsa_user_sgpr_kernarg_segment_ptr 1
  .amdhsa_system_sgpr_workgroup_id_x 1
  .amdhsa_float_denorm_mode_32 3
.end_amdhsa_kernel
"""
    open(cfg.o, "w").write(txt)


if __name__ == "__main__":
    main()
```

```python
import math, struct, sys, argparse
from asmlib import Op, Emitter, schedule

NAME = "standalone__modern_conv_block_slak__vision_kernel"

K0 = -2.0 * math.sqrt(2.0 / math.pi) * math.log2(math.e)
K1 = K0 * 0.044715
CS = -(abs(K1) ** (1.0 / 3.0))
KK = K0 / CS


def f32(x): return "0x%08x" % struct.unpack("<I", struct.pack("<f", x))[0]
def f16bits(x): return struct.unpack("<H", struct.pack("<e", x))[0]


LDS_TOTAL = 163840
STG = [71680, 100096, 121856]
ROWB = 2176
CONVA = 143616
TP = 93952
TN = TP + 65536
TP_DW, TN_DW = 1536, 1088
SPARE = 93440
BVEC = 93184
SUMS = 155392
BIASV = SUMS + 1536
MEANP = BIASV + 384
assert MEANP + 16 <= 157440 and TN + TN_DW * 4 == LDS_TOTAL


def w1_addr(f): return f * 1024 if f < 70 else 157440 + (f - 70) * 1024
def w2_addr(f): return 71680 + f * 1024 if f < 21 else 100096 + (f - 21) * 1024
def raw2_addr(row): return 71680 + row * 192 if row < 112 else 100096 + (row - 112) * 192


S_X, S_OUT, S_WS, S_W1, S_W2, S_DW, S_G, S_B, S_DBG, S_CODE = 4, 8, 12, 16, 20, 24, 28, 32, 36, 40
S_KA = 44
S_WAVE, S_Y0, S_X0, S_T0, S_T1, S_T2, S_T3 = 62, 63, 64, 65, 66, 67, 68
S_M0 = 70
S_ROW = 76
S_K16, S_TBASE, S_SCALE, S_UNSC, S_DELTA, S_64, S_128, S_SHARD = 84, 85, 86, 87, 88, 89, 90, 91
S_SAVE = 92
S_ST = 94
S_MUL4 = 96
S_CNT = 97
S_W2M = 69
S_PF = 100


def srd(b): return f"s[{b}:{b+3}]"
def v(n, k=1): return f"v{n}" if k == 1 else f"v[{n}:{n+k-1}]"
def a(n, k=1): return f"a{n}" if k == 1 else f"a[{n}:{n+k-1}]"


V_TID = 0
V_LANE16 = 1
V_FB1 = 2
V_FB2 = 3
V_IDX = 4
V_CA = 5
V_CB = 6
V_DMA = 12
V_G = 18
V_BB = 20
V_FLAG = 21
V_SQ = 22
V_LN = 46
V_E = 62
V_B = 70
V_A = 86
V_POOL = 102
V_PF, V_PFD = 158, 159
V_Y = 160

A_LN = 0
A_CVA = 144
A_CVB = 156
A_W = 192
A_ZERO = 240
A_TAB = 244
A_BIAS = 240
A_ONES = 248
A_ID = 252


class Gen:
    def __init__(self, cfg):
        self.cfg = cfg
        self.em = Emitter(cfg.cover)
        self.lut1 = cfg.lut1
        self.nstamp = 0

    def seq(self, lines):
        for l in lines.strip().split("\n"):
            l = l.split(";")[0].strip()
            if l:
                self.em.emit(Op(l))

    def stamp(self):
        if not self.cfg.stamps: return
        i = self.nstamp; self.nstamp += 1
        self.seq(f"""
            s_memtime s[{S_ST}:{S_ST+1}]
            s_waitcnt lgkmcnt(0)
            v_writelane_b32 v{self.cfg.stamp_reg}, s{S_ST}, {i}
            s_memrealtime s[{S_ST}:{S_ST+1}]
            s_waitcnt lgkmcnt(0)
            v_writelane_b32 v{self.cfg.stamp_reg}, s{S_ST}, {32 + i}
        """)

    def code_prefetch(self):
        self.em.emit(Op(f"s_mov_b32 s{S_PF}, {self.pf_next}"))
        o = Op(f"buffer_load_dword v{V_PFD}, v{V_PF}, {srd(S_CODE)}, s{S_PF} offen", lat=1500); o.defs = []
        self.em.emit(o)
        self.pf_next += 8192

    def frag_base(self, addr):
        b = addr >> 16
        return (V_LANE16, V_FB1, V_FB2)[b], addr & 0xffff

    def prologue(self):
        c = self.cfg
        s = self.seq
        s(f"""
            s_cmp_ge_u32 s2, 0x100
            s_cbranch_scc0 L_go
            s_endpgm
            L_go:
            s_load_dwordx16 s[{S_KA}:{S_KA+15}], s[0:1], 0
            s_load_dwordx2 s[{S_KA+16}:{S_KA+17}], s[0:1], 64
            s_getpc_b64 s[{S_CODE}:{S_CODE+1}]
            L_pc:
        """)
        self.pc_addr = self.em.mach.addr
        self.pf_next = 0
        s(f"""
            s_and_b32 s{S_CODE+1}, s{S_CODE+1}, 0xffff
            s_mov_b32 s{S_CODE+2}, L_last-L_pc
            s_mov_b32 s{S_CODE+3}, 0x20000
            v_and_b32 v{V_PF}, 63, v0
            v_lshlrev_b32 v{V_PF}, 7, v{V_PF}
        """)
        if c.prefetch:
            for _ in range(c.pf0): self.code_prefetch()
        s(f"""
            v_lshrrev_b32 v46, 6, v0
            v_and_b32 v47, 63, v0
            v_readfirstlane_b32 s{S_WAVE}, v46
            v_lshlrev_b32 v{V_LANE16}, 4, v47
            v_add_u32 v{V_FB1}, 0x10000, v{V_LANE16}
            v_add_u32 v{V_FB2}, 0x20000, v{V_LANE16}
            s_and_b32 s{S_SHARD}, s2, 7
            s_lshr_b32 s{S_T0}, s2, 3
            s_lshr_b32 s{S_T1}, s{S_T0}, 4
            s_lshl_b32 s{S_Y0}, s{S_SHARD}, 1
            s_add_u32 s{S_Y0}, s{S_Y0}, s{S_T1}
            s_lshl_b32 s{S_Y0}, s{S_Y0}, 5
            s_and_b32 s{S_X0}, s{S_T0}, 15
            s_lshl_b32 s{S_X0}, s{S_X0}, 5
            s_mov_b32 s{S_64}, 64
            s_movk_i32 s{S_128}, 0x80
            s_mov_b32 s{S_K16}, 0x{f16bits(KK):04x}{f16bits(KK):04x}
            s_mov_b32 s{S_TBASE}, {TP}
            s_mov_b32 s{S_DELTA}, 0
        """)
        if c.stamps:
            s(f"v_mov_b32 v{c.stamp_reg}, 0")
        self.stamp()
        s(f"""
            v_and_b32 v48, 31, v47
            v_lshrrev_b32 v49, 5, v47
        """)
        for k in range(6):
            s(f"""
                s_lshl_b32 s{S_T0}, s{S_WAVE}, 6
                s_add_u32 s{S_T0}, s{S_T0}, {256 * k}
                s_min_u32 s{S_T0}, s{S_T0}, 1296
                s_lshl_b32 s{S_M0+k}, s{S_T0}, 4
                v_add_u32 v50, s{S_T0}, v47
                v_mul_u32_u24 v51, 482, v50
                v_lshrrev_b32 v51, 16, v51
                v_mul_u32_u24 v52, 136, v51
                v_sub_u32 v52, v50, v52
                v_lshrrev_b32 v53, 2, v52
                v_and_b32 v52, 3, v52
                v_bfe_u32 v54, v53, 2, 2
                v_xor_b32 v52, v52, v54
                s_sub_u32 s{S_T1}, s{S_X0}, 1
                v_add_u32 v53, s{S_T1}, v53
                s_sub_u32 s{S_T2}, s{S_Y0}, 1
                v_add_u32 v51, s{S_T2}, v51
                v_lshl_add_u32 v51, v51, 9, v53
                s_movk_i32 s{S_T3}, 0xc0
                v_mul_lo_u32 v51, v51, s{S_T3}
                v_lshl_add_u32 v51, v52, 4, v51
                v_cmp_gt_u32 vcc, 0x200, v53
                v_mov_b32 v52, 0x80000000
                v_cndmask_b32 v{V_DMA+k}, v52, v51, vcc
            """)
        s("s_waitcnt lgkmcnt(0)")
        for base, ka, size in ((S_X, 0, 50331648), (S_DW, 1, 1728), (S_W1, 2, 73728), (S_W2, 3, 73728), (S_G, 4, 768),
                               (S_B, 5, 768), (S_OUT, 6, 50331648), (S_DBG, 7, 256), (S_WS, 8, c.ws_bytes)):
            s(f"""
                s_mov_b32 s{base}, s{S_KA+2*ka}
                s_and_b32 s{base+1}, s{S_KA+2*ka+1}, 0xffff
                s_mov_b32 s{base+2}, {size}
                s_mov_b32 s{base+3}, 0x20000
            """)
        if c.preread:
            pol = "" if c.preread == "def" else c.preread
            s(f"""
                s_lshl_b32 s{S_T0}, s2, 2
                s_add_u32 s{S_T0}, s{S_T0}, s{S_WAVE}
                s_mul_i32 s{S_T0}, s{S_T0}, 49152
            """)
            for k in range(48):
                s(f"buffer_load_dwordx4 {v(160 + 4 * (k % 24), 4)}, v{V_LANE16}, {srd(S_X)}, s{S_T0} offen offset:{1024 * (k % 4)} {pol}")
                if k % 4 == 3: s(f"s_add_u32 s{S_T0}, s{S_T0}, 4096")
            s("s_waitcnt vmcnt(0)")
        for q in range(3):
            for op in self.dma_ops(q, None): self.em.emit(op)
        s(f"""
            v_mul_u32_u24 v50, 12, v48
            v_mul_u32_u24 v51, 3072, v49
            v_add_u32 v50, v50, v51
        """)
        for i in range(3):
            s(f"""
                s_mul_i32 s{S_T0}, s{S_WAVE}, 3
                s_add_u32 s{S_T0}, s{S_T0}, {i}
                s_lshr_b32 s{S_T1}, s{S_T0}, 1
                s_and_b32 s{S_T0}, s{S_T0}, 1
                s_mul_i32 s{S_T1}, s{S_T1}, {16 * 768}
                s_mul_i32 s{S_T0}, s{S_T0}, 384
                s_add_u32 s{S_T0}, s{S_T0}, s{S_T1}
                s_add_u32 s{S_T1}, s{S_T0}, {8 * 768}
            """)
            for j in range(8):
                s(f"buffer_load_dwordx3 {v(160 + 32 * i + 4 * j, 3)}, v50, {srd(S_W1)}, s{S_T0 if j < 4 else S_T1} offen offset:{(j & 3) * 768}")
        for k in range(4):
            s(f"""
                v_add_u32 v50, {256 * k}, v0
                v_lshrrev_b32 v51, 5, v50
                v_mul_u32_u24 v52, 57, v51
                v_lshrrev_b32 v52, 9, v52
                v_mul_u32_u24 v53, 9, v52
                v_sub_u32 v53, v51, v53
                v_mul_u32_u24 v53, 96, v53
                v_lshl_add_u32 v53, v52, 5, v53
                v_add_u32 v53, v53, v48
                v_lshlrev_b32 v53, 1, v53
                buffer_load_ushort v{102 + k}, v53, {srd(S_DW)}, 0 offen
            """)
        s(f"""
            v_min_u32 v50, 47, v47
            s_mul_i32 s{S_T0}, s{S_WAVE}, 96
            v_lshl_add_u32 v50, v50, 1, s{S_T0}
            v_lshrrev_b32 v51, 5, v50
            v_and_b32 v52, 31, v50
            v_mul_u32_u24 v52, 6, v52
            v_add_u32 v52, v52, v51
            v_cmp_lt_u32 vcc, 5, v51
            v_mov_b32 v53, 0
            v_mov_b32 v54, 186
            v_cndmask_b32 v53, v53, v54, vcc
            v_add_u32 v52, v52, v53
            v_lshlrev_b32 v52, 1, v52
            buffer_load_ushort v{V_G}, v52, {srd(S_G)}, 0 offen
            buffer_load_ushort v{V_G+1}, v52, {srd(S_G)}, 0 offen offset:12
            buffer_load_ushort v{V_BB}, v52, {srd(S_B)}, 0 offen
            buffer_load_ushort v{V_FLAG}, v52, {srd(S_B)}, 0 offen offset:12
        """)
        s(f"""
            s_cmp_ge_u32 s2, 8
            s_cbranch_scc1 L_noinit
            s_cmp_lg_u32 s{S_WAVE}, 0
            s_cbranch_scc1 L_noinit
            v_mov_b32 v52, 0
            v_mov_b32 v53, 0
            v_mov_b32 v54, 0
            v_mov_b32 v55, 0
            s_lshl_b32 s{S_T0}, s2, 11
            s_lshl_b32 s{S_T1}, s2, 8
            s_add_u32 s{S_T1}, s{S_T1}, 0x10000
            v_and_b32 v50, 7, v47
            v_lshlrev_b32 v50, 11, v50
            buffer_store_dwordx4 v[52:55], v{V_LANE16}, {srd(S_WS)}, s{S_T0} offen sc1
            buffer_store_dwordx4 v[52:55], v{V_LANE16}, {srd(S_WS)}, s{S_T0} offen offset:1024 sc1
            buffer_store_dword v52, v50, {srd(S_WS)}, s{S_T1} offen sc1
            s_waitcnt vmcnt(0)
            v_mov_b32 v52, 1
            v_mov_b32 v53, 0
            s_mov_b64 exec, 1
            buffer_atomic_add v52, v53, {srd(S_DBG)}, 0 offen
            s_mov_b64 exec, -1
            L_noinit:
        """)
        s(f"""
            v_and_b32 v50, 3, v48
            v_xor_b32 v51, 1, v50
            v_lshl_or_b32 v50, v51, 2, v50
            v_mul_u32_u24 v{V_IDX}, 0x1111, v50
            v_bfe_u32 v50, v48, 3, 1
            v_lshlrev_b32 v51, 4, v48
            v_add_u32 v51, {CONVA}, v51
            v_cmp_eq_u32 vcc, v50, v49
            v_mov_b32 v52, 0x40000000
            v_cndmask_b32 v{V_CA}, v52, v51, vcc
            s_mul_i32 s{S_T0}, s{S_WAVE}, {2 * ROWB}
            s_add_u32 s{S_T0}, s{S_T0}, {STG[0]}
        """)
        for dx in range(3):
            for q in range(2):
                s(f"""
                    v_add_u32 v50, {dx}, v48
                    v_bfe_u32 v51, v50, 2, 2
                    v_lshl_or_b32 v52, v49, 1, {q}
                    v_xor_b32 v51, v51, v52
                    v_lshl_add_u32 v51, v50, 2, v51
                    v_lshl_add_u32 v{V_CB + 2 * dx + q}, v51, 4, s{S_T0}
                """)
        for p in range(4):
            for t in range(2):
                s(f"""
                    s_lshl_b32 s{S_T0}, s{S_WAVE}, 1
                    s_add_u32 s{S_T0}, s{S_T0}, s{S_Y0}
                    s_add_u32 s{S_T0}, s{S_T0}, {8 * p + t}
                    s_lshl_b32 s{S_T0}, s{S_T0}, 9
                    s_add_u32 s{S_T0}, s{S_T0}, s{S_X0}
                    s_mul_i32 s{S_ROW + 2 * p + t}, s{S_T0}, 0xc0
                """)
        s(f"""
            s_cmp_ge_u32 s{S_WAVE}, 1
            s_cselect_b32 s{S_W2M}, {100096 - 21 * 1024 - 71680}, 0
            s_lshl_b32 s{S_T0}, s{S_WAVE}, 10
            s_add_u32 s{S_T0}, s{S_T0}, {71680 + 5 * 4096}
            s_add_u32 s{S_W2M}, s{S_W2M}, s{S_T0}
        """)
        for r in range(4): s(f"v_accvgpr_write_b32 a{A_ZERO + r}, 0")
        for r in range(24): s(f"v_mov_b32 v{V_SQ + r}, 0")
        s(f"""
            v_lshrrev_b32 v50, 4, v48
            v_bfe_u32 v51, v48, 2, 1
            v_lshl_or_b32 v50, v50, 1, v51
            v_lshlrev_b32 v56, 4, v0
        """)
        for k in range(4):
            for g in range(4):
                s(f"""
                    v_cmp_eq_u32 vcc, {g}, v50
                    v_cndmask_b32 v{52 + g}, 0, v{102 + k}, vcc
                """)
            if k == 3:
                s(f"""
                    v_cmp_gt_u32 vcc, 96, v0
                    s_and_saveexec_b64 s[{S_SAVE}:{S_SAVE+1}], vcc
                    s_cbranch_execz L_ca_skip
                """)
            s(f"v_add_u32 v57, {CONVA + 4096 * k}, v56")
            s(f"ds_write_b128 v57, v[52:55]")
            if k == 3:
                s(f"""
                    s_waitcnt lgkmcnt(0)
                    L_ca_skip:
                    s_mov_b64 exec, s[{S_SAVE}:{S_SAVE+1}]
                """)
        s(f"v_lshl_or_b32 v{V_BB}, v{V_FLAG}, 16, v{V_BB}")
        s(f"v_lshlrev_b32 v{V_G}, 16, v{V_G}")
        s(f"v_lshlrev_b32 v{V_G+1}, 16, v{V_G+1}")
        raw = [160 + 4 * j + d for j in range(24) for d in range(3)]
        s("v_pk_maximum3_f16 v58, v160, v161, v161\nv_pk_minimum3_f16 v59, v160, v161, v161")
        for r in range(2, 72, 2):
            s(f"v_pk_maximum3_f16 v58, v58, v{raw[r]}, v{raw[r+1]}\nv_pk_minimum3_f16 v59, v59, v{raw[r]}, v{raw[r+1]}")
        s(f"""
            v_and_b32 v58, 0x7fff7fff, v58
            v_and_b32 v59, 0x7fff7fff, v59
            v_pk_max_u16 v58, v58, v59
            v_lshrrev_b32 v59, 16, v58
            v_and_b32 v58, 0xffff, v58
            v_max_u32 v58, v58, v59
            v_mov_b32 v59, {SPARE}
            v_mov_b32 v57, 0
            ds_write_b32 v59, v57
            s_waitcnt lgkmcnt(0)
            s_barrier
            ds_max_u32 v59, v58
            L_prep:
            s_add_u32 s{S_T0}, s{S_DELTA}, 112
            s_lshl_b32 s{S_T0}, s{S_T0}, 23
            s_sub_u32 s{S_SCALE}, {f32(-CS)}, s{S_T0}
            s_add_u32 s{S_UNSC}, 0x3f800000, s{S_T0}
        """)
        for k in range(11):
            neg = k >= 6
            i0 = 256 * k - (TP_DW if neg else 0)
            sg = "" if neg else "-"
            s(f"""
                v_add_u32 v50, {i0}, v0
                v_min_u32 v50, {(TN_DW if neg else TP_DW) - 1}, v50
                v_lshlrev_b32 v52, 17, v50
                v_or_b32 v52, 0x8000, v52
                v_add_u32 v53, 0x10000, v52
                v_mul_f32_e64 v52, {sg}v52, s{S_UNSC}
                v_mul_f32_e64 v53, {sg}v53, s{S_UNSC}
                v_fmaak_f32 v54, v52, v52, {f32(KK)}
                v_fmaak_f32 v55, v53, v53, {f32(KK)}
                v_mul_f32 v54, v52, v54
                v_mul_f32 v55, v53, v55
                v_exp_f32 v54, v54
                v_exp_f32 v55, v55
                v_lshlrev_b32 v50, 2, v50
                v_add_f32 v54, 1.0, v54
                v_add_f32 v55, 1.0, v55
                v_rcp_f32 v54, v54
                v_rcp_f32 v55, v55
                v_add_u32 v50, {TN if neg else TP}, v50
                v_mul_f32 v52, v52, v54
                v_mul_f32 v53, v53, v55
                v_cvt_pk_f16_f32 v54, v52, v53
                v_mul_f32 v52, v52, v52
                v_mul_f32 v53, v53, v53
                v_accvgpr_write_b32 a{A_TAB + k}, v54
                v_cvt_pk_bf16_f32 v52, v52, v53
                ds_write_b32 v50, v52
            """)
        s(f"s_cmp_lg_u32 s{S_DELTA}, 0\ns_cbranch_scc1 L_w1done")
        s("s_mov_b32 s98, 0x05040100\ns_mov_b32 s99, 0x07060302")
        for i in range(3):
            s(f"""
                s_mul_i32 s{S_T0}, s{S_WAVE}, 3
                s_add_u32 s{S_T0}, s{S_T0}, {i}
                s_lshr_b32 s{S_T1}, s{S_T0}, 1
                s_and_b32 s{S_T0}, s{S_T0}, 1
                s_mul_i32 s{S_T2}, s{S_T0}, 36
                s_add_u32 s{S_T2}, s{S_T2}, s{S_T1}
                s_cmp_ge_u32 s{S_T2}, 40
                s_cselect_b32 s{S_T3}, {157440 - 70 * 1024}, 0
                s_lshl_b32 s{S_T2}, s{S_T2}, 10
                v_add_u32 v57, s{S_T2}, v{V_LANE16}
                v_add_u32 v56, s{S_T3}, v57
            """)
            for c6 in range(6):
                d, e = c6 >> 1, c6 & 1
                R = lambda j: 160 + 32 * i + 4 * j + d
                t0 = 62 + 4 * (c6 & 1)
                for t in range(4):
                    s(f"v_perm_b32 v{t0 + t}, v{R(2*t+1)}, v{R(2*t)}, s{98 + e}")
                s(f"ds_write_b128 v{56 if c6 == 5 else 57}, {v(t0, 4)} offset:{6144 * c6}")
        s("L_w1done:")
        s(f"""
            s_waitcnt vmcnt(0) lgkmcnt(0)
            s_barrier
            ds_read_b32 v58, v59
            s_waitcnt lgkmcnt(0)
            v_readfirstlane_b32 s{S_T0}, v58
            s_lshr_b32 s{S_T0}, s{S_T0}, 7
            s_sub_i32 s{S_T0}, s{S_T0}, {127 + 2}
            s_max_i32 s{S_T0}, s{S_T0}, 0
            s_min_i32 s{S_T0}, s{S_T0}, 12
            s_cmp_eq_u32 s{S_T0}, s{S_DELTA}
            s_mov_b32 s{S_DELTA}, s{S_T0}
            s_cbranch_scc0 L_prep
        """)
        self.stamp()

    def dma_ops(self, q, tr, stream="DX"):
        p, cb = divmod(q, 3)
        ops = []
        so = ("0", f"s{S_64}", f"s{S_128}")[cb]
        for k in range(6):
            ops.append(Op(f"s_add_u32 m0, s{S_M0+k}, {STG[cb]}", stream=stream, tr=tr or ()))
            ops.append(Op(f"buffer_load_dwordx4 v{V_DMA+k}, {srd(S_X)}, {so} offen {self.cfg.xpol} lds", stream=stream,
                          tw=[("dma", q)], lat=self.cfg.dma_lat))
        return ops

    def conv_unit(self, q, bar_tok):
        p, cb = divmod(q, 3)
        ops = []
        Y = [V_Y + 48 * t + 16 * cb for t in range(2)]
        for t in range(2):
            ops.append(Op(f"v_mfma_f32_32x32x16_bf16 {v(Y[t],16)}, {a(A_ZERO,4)}, {a(A_ZERO,4)}, 0", stream="MC"))
        for dx in range(3):
            for ir in range(4):
                bb = A_CVB + 8 * (self.cvb % 3); self.cvb += 1
                for h in range(2):
                    ops.append(Op(f"ds_read_b128 {a(bb + 4*h,4)}, v{V_CB + 2*dx + h} offset:{STG[cb] - STG[0] + ir * ROWB}",
                                  stream="DC", tr=[bar_tok], tw=[("rd", q)]))
                if ir < 3:
                    ab = A_CVA + 4 * (self.cva % 3); self.cva += 1
                    ops.append(Op(f"ds_read_b128 {a(ab,4)}, v{V_CA} offset:{(cb * 9 + ir * 3 + dx) * 512}", stream="DC",
                                  tw=[("rd", q)]))
                    cur = ab
                    ops.append(Op(f"v_smfmac_f32_32x32x32_bf16 {v(Y[0],16)}, {a(cur,4)}, {a(bb,8)}, v{V_IDX}", stream="MC"))
                if ir > 0:
                    ops.append(Op(f"v_smfmac_f32_32x32x32_bf16 {v(Y[1],16)}, {a(prev,4)}, {a(bb,8)}, v{V_IDX}", stream="MC"))
                prev = cur
        return ops

    def ln_stats(self, p, cb):
        ops = []
        for t in range(2):
            Y = V_Y + 48 * t + 16 * cb
            S, Q = V_LN + 4 * t, V_LN + 4 * t + 2
            g = []
            for k in range(8):
                y = v(Y + 2 * k, 2)
                if cb == 0 and k == 0:
                    g.append(f"v_pk_mul_f32 {v(Q,2)}, {y}, {y}")
                else:
                    g.append(f"v_pk_fma_f32 {v(Q,2)}, {y}, {y}, {v(Q,2)}")
                if cb == 0 and k == 0: continue
                if cb == 0 and k == 1:
                    g.append(f"v_pk_add_f32 {v(S,2)}, {v(Y,2)}, {y}")
                else:
                    g.append(f"v_pk_add_f32 {v(S,2)}, {v(S,2)}, {y}")
            ops += [Op(x, stream="VL") for x in g]
        return ops

    def ln_finish(self, p):
        L = []
        for t in range(2):
            S, Q = V_LN + 4 * t, V_LN + 4 * t + 2
            L += [f"v_add_f32 v{S}, v{S}, v{S+1}", f"v_add_f32 v{Q}, v{Q}, v{Q+1}"]
        for t in range(2):
            S, Q = V_LN + 4 * t, V_LN + 4 * t + 2
            L += [f"v_permlane32_swap_b32 v{S}, v{Q}"]
        for t in range(2):
            S, Q = V_LN + 4 * t, V_LN + 4 * t + 2
            L += [f"v_add_f32 v{S}, v{S}, v{Q}"]
        for t in range(2):
            S, Q = V_LN + 4 * t, V_LN + 4 * t + 2
            L += [f"v_mov_b32 v{Q}, v{S}"]
        for t in range(2):
            S, Q = V_LN + 4 * t, V_LN + 4 * t + 2
            L += [f"v_permlane32_swap_b32 v{S}, v{Q}"]
        stages = [
            lambda S, Q: f"v_mul_f32 v{S}, {f32(1/96)}, v{S}",
            lambda S, Q: f"v_mul_f32 v{Q}, {f32(1/96)}, v{Q}",
            lambda S, Q: f"v_fma_f32 v{Q}, -v{S}, v{S}, v{Q}",
            lambda S, Q: f"v_max_f32 v{Q}, 0, v{Q}",
            lambda S, Q: f"v_add_f32 v{Q}, {f32(1e-5)}, v{Q}",
            lambda S, Q: f"v_rsq_f32 v{Q}, v{Q}",
            lambda S, Q: f"v_mul_f32 v{Q}, {f32(CS) if S != V_LN else 's%d' % S_SCALE}, v{Q}",
            lambda S, Q: f"v_mul_f32_e64 v{S}, -v{S}, v{Q}",
        ]
        for st in stages:
            for t in range(2):
                L.append(st(V_LN + 4 * t, V_LN + 4 * t + 2))
        ops = [Op(x, stream="VL") for x in L]
        for t in range(2):
            S, Q = V_LN + 4 * t, V_LN + 4 * t + 2
            for k in range(24):
                y = v(V_Y + 48 * t + 2 * k, 2)
                ops.append(Op(f"v_pk_fma_f32 {y}, {y}, {v(Q,2)}, {v(S,2)} op_sel_hi:[1,0,0]", stream="VL"))
        n = 0
        pend = []
        for t in range(2):
            for k in range(24):
                tmp = V_LN + 8 + (n % 8); n += 1
                ops.append(Op(f"v_cvt_pk_bf16_f32 v{tmp}, v{V_Y + 48*t + 2*k}, v{V_Y + 48*t + 2*k + 1}", stream="VL"))
                pend.append(Op(f"v_accvgpr_write_b32 a{A_LN + 48*p + 24*t + k}, v{tmp}", stream="VL"))
                if len(pend) > 2: ops.append(pend.pop(0))
        return ops + pend

    def w_read(self, addr, pool, stream, tr=()):
        buf = A_W + 4 * pool
        b, off = self.frag_base(addr)
        return Op(f"ds_read_b128 {a(buf,4)}, v{b} offset:{off}", stream=stream, tr=tr), buf

    def chain(self, acc, A, B):
        E = V_E
        CV = [f"v_cvt_pk_f16_f32 v{A+i}, v{acc+2*i}, v{acc+2*i+1}" for i in range(8)]
        T = [f"v_pk_fma_f16 v{B+i}, v{A+i}, v{A+i}, s{S_K16}" for i in range(8)]
        Z = [f"v_pk_mul_f16 v{B+i}, v{A+i}, v{B+i}" for i in range(8)]
        hi = "dst_sel:WORD_1 dst_unused:UNUSED_PRESERVE src0_sel:WORD_1"
        def tr(op):
            l = []
            for i in range(10):
                if i < 8: l.append(f"{op} v{E+i}, v{B+i}")
                if i >= 2: l.append(f"{op}_sdwa v{E+i-2}, v{B+i-2} {hi}")
            return l
        D = [f"v_pk_add_f16 v{B+i}, v{E+i}, 1.0 op_sel_hi:[1,0]" for i in range(8)]
        Y = [f"v_pk_mul_f16 v{A+i}, v{A+i}, v{E+i}" for i in range(8)]
        head = []
        for i in range(10):
            if i < 8: head.append(CV[i])
            if 1 <= i < 9: head.append(T[i-1])
            if i >= 2: head.append(Z[i-2])
        return head, tr("v_exp_f16"), D, tr("v_rcp_f16"), Y

    def act_stream(self, N, phase, bufs, g1, g2):
        ops = []
        O = lambda l, st: [Op(x, stream=st) for x in l]
        def AD(k):
            acc = bufs(k)[0]
            ad = [Op(f"v_mad_u32_u16 v{acc+i}, v{acc+i}, 2, s{S_TBASE} op_sel:[1,0,0,0]", stream="VN") for i in range(16)]
            ga = [Op(f"{'ds_read_u16_d16_hi' if (phase == 1 or i & 1) else 'ds_read_u16'} v{acc+i}, v{acc+i}", stream="DG", kind="dsg") for i in range(16)]
            return ad, ga
        ch = {}
        def CH(k):
            if k not in ch:
                b = bufs(k); ch[k] = self.chain(b[1], b[3], b[4])
            return ch[k]
        ops += g1(0, 0) + g1(0, 1)
        ad, ga = AD(0); ops += ad + ga + O(CH(0)[0], "VN") + g1(1, 0)
        if phase == 1: ops += g2(0, 0)
        for k in range(N):
            head, E, D, R, Y = CH(k)
            last = k + 1 == N
            if not last: ops += g1(k + 1, 1)
            ops += O(E, "VT")
            if phase == 2:
                b = bufs(k)
                ops += O([f"v_or_b32 v{b[2]+i}, v{b[0]+2*i}, v{b[0]+2*i+1}" for i in range(8)], "VN") + g2(k, 0)
            D = O(D, "VN")
            if not last:
                ad, ga = AD(k + 1)
                lead = self.cfg.ad_lead if phase == 1 else 0
                ops += ad[:lead]; ad = ad[lead:]
                for i in range(8):
                    ops += ad[len(ad) * i // 8: len(ad) * (i + 1) // 8] + [D[i]]
                ops += ga
            else:
                ops += D
            if k + 2 < N: ops += g1(k + 2, 0)
            ops += O(R, "VT")
            Y = O(Y, "VN")
            if not last:
                h2 = O(CH(k + 1)[0], "VN")
                ops += h2[:8]
                for i in range(8): ops += h2[8 + 2 * i: 10 + 2 * i] + [Y[i]]
            else:
                ops += Y
            ops += g2(k, 1)
            if phase == 1 and not last: ops += g2(k + 1, 0)
        return ops

    def phase1(self):
        c = self.cfg
        self.cvb = self.cva = 0
        ops = []
        bar = lambda name, tr: Op("s_barrier", stream="X", tr=tr, tw=[name])
        adv = lambda: [Op(f"v_add_u32 v{V_DMA+k}, {8 * 98304}, v{V_DMA+k}", stream="VL") for k in range(6)]
        ops.append(Op("s_nop 0", stream="X", tw=[("bar", 0), ("dma", 0), ("dma", 1), ("dma", 2)]))
        def unit(q):
            r = []
            if q > 0:
                r.append(bar(("bar", q), [("rd", q - 1), ("dma", q)]))
                if q + 2 < 12 and q != 3:
                    if (q + 2) % 3 == 0: r += adv()
                    r += self.dma_ops(q + 2, [("bar", q)])
            r += self.conv_unit(q, ("bar", q))
            r += self.ln_stats(q // 3, q % 3)
            if q == 2:
                r.append(bar(("bar", "2b"), [("rd", 2)]))
                r += self.dma_ops(5, [("bar", "2b")])
            if q % 3 == 2: r += self.ln_finish(q // 3)
            return r
        for q in range(3): ops += unit(q)
        def bufs(k): return (V_POOL + 16 * (k % 2), V_POOL + 32, None, V_A + 8 * (k % 2), V_B + 8 * (k % 2))
        self.wn = 0
        frag = {}
        extra = {}
        def g1(k, t):
            p, ch = divmod(k, 12); r = []
            if (k, t) in extra: r += extra[(k, t)]()
            acc = bufs(k)[t]
            for ks in range(6):
                if t == 0:
                    op, frag[ks] = self.w_read(w1_addr(6 * ch + ks), self.wn % 12, "D1"); self.wn += 1
                    r.append(op)
                cc = "0" if ks == 0 else v(acc, 16)
                r.append(Op(f"v_mfma_f32_32x32x16_bf16 {v(acc,16)}, {a(A_LN + 48*p + 24*t + 4*ks,4)}, {a(frag[ks],4)}, {cc}", stream="M1"))
            return r
        def g2(k, t):
            sq = V_SQ + 2 * (k % 12); b = bufs(k)
            if t == 1:
                return [Op(f"v_dot2c_f32_f16 v{sq + (i & 1)}, v{b[3]+i}, v{b[3]+i}", stream="VW") for i in reversed(range(8))]
            return [Op(f"v_pk_add_f32 {v(sq,2)}, {v(sq,2)}, {v(b[0]+2*i,2)}", stream="VW") for i in reversed(range(8))]
        for p in range(3):
            extra[(12 * p + 11, 1)] = (lambda p=p: unit(3 * p + 3) + unit(3 * p + 4) + unit(3 * p + 5))
        def tail():
            r = [bar(("bar", 12), [("rd", 11)])]
            for k in range(18):
                r.append(Op(f"s_add_u32 s{S_T0}, s{S_T1}, {4096 * k}", stream="DX", tr=[("bar", 12)]))
                if k == 5: r.append(Op(f"s_mov_b32 m0, s{S_W2M}", stream="DX"))
                else: r.append(Op(f"s_add_u32 m0, s{S_T0}, {71680 if k < 5 else 100096 - 21 * 1024}", stream="DX"))
                r.append(Op(f"buffer_load_dwordx4 v{V_LANE16}, {srd(S_W2)}, s{S_T0} offen lds", stream="DX", tw=[("w2raw",)], lat=c.dma_lat))
            r.append(Op(f"buffer_load_dword v{V_FLAG}, v{V_CB}, {srd(S_DBG)}, 0 offen sc1", stream="DX", lat=c.dma_lat))
            r.append(Op(f"ds_write_b64 v{V_CB+1}, {a(A_ZERO,2)}", stream="DX", tr=[("bar", 12)], tw=[("w2raw",)]))
            r.append(Op(f"ds_write_b32 v{V_CB+2}, v{V_BB}", stream="DX", tr=[("bar", 12)], tw=[("w2raw",)]))
            r.append(bar(("bar", 13), [("w2raw",)]))
            return r
        def tail_pre():
            L = [f"s_lshl_b32 s{S_T1}, s{S_WAVE}, 10",
                 f"v_mov_b32 v{V_CB}, 0",
                 f"v_min_u32 v{V_CB+1}, 239, v0",
                 f"v_lshlrev_b32 v{V_CB+1}, 3, v{V_CB+1}",
                 f"v_add_u32 v{V_CB+1}, {SUMS}, v{V_CB+1}",
                 f"v_lshrrev_b32 v{V_CB+2}, 2, v{V_LANE16}",
                 f"v_min_u32 v{V_CB+2}, 188, v{V_CB+2}",
                 f"s_mul_i32 s{S_T3}, s{S_WAVE}, 192",
                 f"s_add_u32 s{S_T3}, s{S_T3}, {BVEC}",
                 f"v_add_u32 v{V_CB+2}, s{S_T3}, v{V_CB+2}"]
            return [Op(x, stream="VL") for x in L]
        extra[(37, 0)] = lambda: tail_pre() + tail()
        ops += self.act_stream(48, 1, bufs, g1, g2)
        return self.run(ops, ["M1", "MC"], ["VW", "VL", "VN", "VT"], ["D1", "DG", "DC", "DX"], ["X"], "phase1", c.gap1)

    def run(self, ops, ms, vs, ds, xs, name, gap):
        c = self.cfg
        if c.nosched:
            for o in ops: self.em.emit(o)
            return
        tr = []
        m = self.em.mach
        t0, f0, n0 = m.t, m.fetch_stall, len(self.em.out)
        step = len(ops) // c.fine if c.stamps and c.fine else 0
        def hook(i):
            if step and i and i % step == 0 and i // step < c.fine: self.stamp()
            if c.prefetch and c.jit and self.em.out[-1].kind == "m" and self.pf_next - (m.addr - self.pc_addr) < c.jit:
                self.code_prefetch()
        schedule(self.em, ops, ms, vs, ds, xs, trace=tr, dlimit=c.dlimit, gap=gap, hook=hook, drop=set(c.abl.split(",")))
        st = {}
        for now, d, s, txt in tr: st[s] = st.get(s, 0) + d
        new = self.em.out[n0:]
        print(f"; {name}: {len(new)} instrs, model {m.t - t0} cycles, issue sum {sum(o.cost for o in new)}, fetch stalls {m.fetch_stall - f0}, "
              f"waits {sum(o.kind == 'wait' for o in new)}, nops {sum(o.cost // 4 for o in new if o.kind == 'nop')}, stalls {st}", file=sys.stderr)
        if c.trace:
            with open(f"trace_{name}.txt", "w") as f:
                prev = t0
                for o in new:
                    gap = o.t_issue - prev
                    f.write(f"{o.t_issue - t0:6d} {'+%d' % gap if gap > 0 else '':>5s} {o.stream or '':3s} {o.text}\n")
                    prev = o.t_issue + o.cost

    def switch(self):
        c = self.cfg
        s = self.seq
        self.stamp()
        s("s_nop 3")
        for ch in range(12): s(f"v_add_f32 v{V_SQ + 2*ch}, v{V_SQ + 2*ch}, v{V_SQ + 2*ch + 1}")
        s("s_nop 1")
        for i in range(6): s(f"v_permlane32_swap_b32 v{V_SQ + 4*i}, v{V_SQ + 4*i + 2}")
        s(f"v_lshrrev_b32 v46, 2, v{V_LANE16}\nv_add_u32 v46, {SUMS}, v46")
        for i in range(6): s(f"v_add_f32 v{V_SQ + 4*i}, v{V_SQ + 4*i}, v{V_SQ + 4*i + 2}")
        for i in range(6): s(f"ds_add_f32 v46, v{V_SQ + 4*i} offset:{256 * i}")
        s(f"""
            v_lshlrev_b32 v47, 2, v0
            v_add_u32 v48, {SUMS}, v47
            s_waitcnt vmcnt(0) lgkmcnt(0)
            s_barrier
            ds_read_b32 v50, v48
            ds_read_b32 v51, v48 offset:1024
            v_readfirstlane_b32 s{S_T0}, v{V_FLAG}
            s_mov_b32 s{S_CNT}, 0
            s_cmp_ge_u32 s{S_T0}, 8
            s_cbranch_scc1 L_flag_ok
            L_flag_poll:
            buffer_load_dword v{V_FLAG}, v{V_CB}, {srd(S_DBG)}, 0 offen sc1
            s_add_u32 s{S_CNT}, s{S_CNT}, 1
            s_waitcnt vmcnt(0)
            v_readfirstlane_b32 s{S_T0}, v{V_FLAG}
            s_cmp_gt_u32 s{S_CNT}, 0x40000
            s_cbranch_scc1 L_flag_ok
            s_cmp_ge_u32 s{S_T0}, 8
            s_cbranch_scc0 L_flag_poll
            L_flag_ok:
            s_lshl_b32 s{S_T0}, s{S_SHARD}, 11
            s_waitcnt lgkmcnt(0)
            buffer_atomic_add_f32 v50, v47, {srd(S_WS)}, s{S_T0} offen
            s_cmp_ge_u32 s{S_WAVE}, 2
            s_cbranch_scc1 L_at_done
            buffer_atomic_add_f32 v51, v47, {srd(S_WS)}, s{S_T0} offen offset:1024
            L_at_done:
        """)
        for k in range(11):
            neg = k >= 6
            i0 = 256 * k - (TP_DW if neg else 0)
            s(f"""
                v_add_u32 v50, {i0}, v0
                v_min_u32 v50, {(TN_DW if neg else TP_DW) - 1}, v50
                v_lshlrev_b32 v50, 2, v50
                v_add_u32 v50, {TN if neg else TP}, v50
                ds_write_b32 v50, a{A_TAB + k}
            """)
        s(f"""
            s_waitcnt vmcnt(0)
            s_barrier
            s_cmp_lg_u32 s{S_WAVE}, 0
            s_cbranch_scc1 L_arrived
            v_lshlrev_b32 v50, 7, v{V_LANE16}
            s_lshl_b32 s{S_T0}, s{S_SHARD}, 8
            s_add_u32 s{S_T0}, s{S_T0}, 0x10000
            v_mov_b32 v51, 1
            s_mov_b64 exec, 0xff
            buffer_atomic_add v51, v50, {srd(S_WS)}, s{S_T0} offen
            s_mov_b64 exec, -1
            L_arrived:
        """)
        s(f"""
            v_lshrrev_b32 v46, 4, v{V_LANE16}
            v_lshrrev_b32 v47, 5, v46
            v_bfe_u32 v48, v46, 2, 2
            v_lshl_add_u32 v48, v47, 2, v48
            v_mul_u32_u24 v48, 6, v48
            v_bfe_u32 v49, v46, 4, 1
            v_lshlrev_b32 v49, 4, v49
            v_and_b32 v50, 1, v46
            v_lshl_add_u32 v49, v50, 3, v49
            v_bfe_u32 v50, v46, 1, 1
            v_lshl_add_u32 v49, v50, 2, v49
            v_lshlrev_b32 v49, 1, v49
            s_mul_i32 s{S_T0}, s{S_WAVE}, 3
            s_cmp_ge_u32 s{S_WAVE}, 2
            s_cselect_b32 s{S_T1}, 186, 0
            s_add_u32 s{S_T0}, s{S_T0}, s{S_T1}
            v_add_u32 v48, s{S_T0}, v48
        """)
        for cl in range(3):
            for ks in range(2):
                for jh in range(2):
                    s(f"""
                        v_add_u32 v50, {cl + 6 * (16 * ks + 8 * jh)}, v48
                        v_cmp_gt_u32 vcc, 112, v50
                        v_mul_u32_u24 v50, 192, v50
                        v_mov_b32 v51, {100096 - 112 * 192}
                        v_mov_b32 v52, 71680
                        v_cndmask_b32 v51, v51, v52, vcc
                        v_add3_u32 v50, v50, v51, v49
                    """)
                    for blk in range(3):
                        f = (cl * 2 + ks) * 3 + blk
                        s(f"ds_read_b64_tr_b16 {v(160 + 4*f + 2*jh, 2)}, v50 offset:{64 * blk}")
        s(f"""
            s_mul_i32 s{S_T0}, s{S_WAVE}, 192
            v_lshlrev_b32 v50, 3, v47
            v_add_u32 v50, s{S_T0}, v50
            v_add_u32 v51, {SUMS}, v50
            v_add_u32 v50, {BVEC}, v50
        """)
        for cl in range(3):
            for ks in range(2):
                for jh in range(2):
                    s(f"ds_read_b64 {v(102 + 4*(cl*2+ks) + 2*jh, 2)}, v50 offset:{2 * (32*cl + 16*ks + 8*jh)}")
        for blk in range(3):
            for g in range(6):
                s(f"v_mfma_f32_32x32x16_bf16 {v(62,16)}, {v(102 + 4*g,4)}, {v(160 + 4*(3*g+blk),4)}, {'0' if g == 0 else v(62,16)}")
            s(f"v_mov_b32 v{56 + blk}, v62")
        s(f"""
            v_and_b32 v52, 31, v46
            v_lshlrev_b32 v52, 2, v52
            v_add_u32 v52, {BIASV}, v52
            s_mov_b32 exec_hi, 0
            ds_add_f32 v52, v56
            ds_add_f32 v52, v57 offset:128
            ds_add_f32 v52, v58 offset:256
            s_mov_b64 exec, -1
        """)
        for r in range(72):
            s(f"""
                v_lshlrev_b32 v{54 + 2*(r&1)}, 16, v{160 + r}
                v_and_b32 v{55 + 2*(r&1)}, 0xffff0000, v{160 + r}
                v_cvt_pk_f16_f32 v{160 + r}, v{54 + 2*(r&1)}, v{55 + 2*(r&1)}
            """)
        s(f"""
            v_and_b32 v53, 31, v46
            v_bfe_u32 v54, v53, 2, 1
            v_lshrrev_b32 v55, 3, v53
            v_cmp_eq_u32 vcc, v54, v47
            v_mov_b32 v54, 7
            v_cndmask_b32 v55, v54, v55, vcc
            v_mov_b32 v56, 0x3f80
        """)
        for g in range(4):
            s(f"""
                v_cmp_eq_u32 vcc, {g}, v55
                v_cndmask_b32 v57, 0, v56, vcc
                v_accvgpr_write_b32 a{A_ID + g}, v57
            """)
        s(f"""
            v_mov_b32 v56, 0x3f803f80
            v_cmp_eq_u32 vcc, 0, v47
            v_cndmask_b32 v57, 0, v56, vcc
            s_waitcnt lgkmcnt(0)
            v_accvgpr_write_b32 a{A_ONES}, v57
            v_accvgpr_write_b32 a{A_ONES+1}, 0
            v_accvgpr_write_b32 a{A_ONES+2}, 0
            v_accvgpr_write_b32 a{A_ONES+3}, 0
            v_mul_u32_u24 v53, 192, v53
            v_lshl_add_u32 v{V_CA}, v47, 5, v53
            v_lshl_add_u32 v{V_CB}, v47, 4, v53
        """)
        s(f"""
            s_cmp_lg_u32 s{S_WAVE}, 0
            s_cbranch_scc1 L_released
            s_lshr_b32 s{S_T0}, s2, 3
            s_and_b32 s{S_T0}, s{S_T0}, 7
            s_lshl_b32 s{S_T0}, s{S_T0}, 11
            s_add_u32 s{S_T0}, s{S_T0}, 0x10000
            v_and_b32 v53, 7, v46
            v_lshlrev_b32 v53, 8, v53
            s_mov_b32 s{S_CNT}, 0
            L_poll:
            buffer_load_dword v54, v53, {srd(S_WS)}, s{S_T0} offen sc1
            s_add_u32 s{S_CNT}, s{S_CNT}, 1
            s_waitcnt vmcnt(0)
            v_cmp_gt_u32 vcc, 32, v54
            s_cmp_gt_u32 s{S_CNT}, 0x40000
            s_cbranch_scc1 L_released
            s_cbranch_vccnz L_poll
            L_released:
            s_waitcnt vmcnt(0) lgkmcnt(0)
            s_barrier
        """)
        self.stamp()
        s(f"""
            v_min_u32 v53, 47, v46
            v_lshlrev_b32 v53, 3, v53
            s_mul_i32 s{S_T0}, s{S_WAVE}, 384
            v_add_u32 v53, s{S_T0}, v53
        """)
        for j in range(8):
            s(f"s_movk_i32 s{S_T1}, {2048 * (j & ~1)}" if not j & 1 else "s_nop 0")
            s(f"buffer_load_dwordx2 {v(62 + 2*j, 2)}, v53, {srd(S_WS)}, s{S_T1} offen offset:{2048 * (j & 1)} sc1")
        for blk in range(3): s(f"ds_read_b32 v{56 + blk}, v52 offset:{128 * blk}")
        for blk in range(3):
            s(f"""
                v_cvt_pk_bf16_f32 v59, v{56 + blk}, v{56 + blk}
                v_lshlrev_b32 v59, 16, v59
                v_sub_f32 v59, v{56 + blk}, v59
                v_cvt_pk_bf16_f32 v59, v{56 + blk}, v59
                v_accvgpr_write_b32 a{A_BIAS + 2*blk}, v59
                v_accvgpr_write_b32 a{A_BIAS + 2*blk + 1}, 0
            """)
        s(f"v_accvgpr_write_b32 a{A_BIAS + 6}, 0\nv_accvgpr_write_b32 a{A_BIAS + 7}, 0")
        for j in range(1, 8): s(f"v_pk_add_f32 v[62:63], v[62:63], {v(62 + 2*j, 2)}")
        s(f"""
            v_mov_b32 v64, {f32(1e-6)}
            v_fmac_f32 v64, {f32(1 / (CS * CS))}, v62
            v_mov_b32 v65, {f32(1e-6)}
            v_fmac_f32 v65, {f32(1 / (CS * CS))}, v63
            v_sqrt_f32 v64, v64
            v_sqrt_f32 v65, v65
            v_cmp_gt_u32 vcc, 48, v46
            v_add_f32 v66, v64, v65
            v_cndmask_b32 v66, 0, v66, vcc
            v_add_f32_dpp v66, v66, v66 row_shr:1 row_mask:0xf bank_mask:0xf bound_ctrl:1
            v_add_f32_dpp v66, v66, v66 row_shr:2 row_mask:0xf bank_mask:0xf bound_ctrl:1
            v_add_f32_dpp v66, v66, v66 row_shr:4 row_mask:0xf bank_mask:0xf bound_ctrl:1
            v_add_f32_dpp v66, v66, v66 row_shr:8 row_mask:0xf bank_mask:0xf bound_ctrl:1
            s_nop 1
            v_readlane_b32 s{S_T0}, v66, 15
            v_readlane_b32 s{S_T1}, v66, 31
            v_readlane_b32 s{S_T2}, v66, 47
            v_mov_b32 v66, s{S_T0}
            v_add_f32 v66, s{S_T1}, v66
            v_add_f32 v66, s{S_T2}, v66
            s_lshl_b32 s{S_T0}, s{S_WAVE}, 2
            s_add_u32 s{S_T0}, s{S_T0}, {MEANP}
            v_mov_b32 v67, s{S_T0}
            v_mov_b32 v68, {MEANP}
            ds_write_b32 v67, v66
            s_waitcnt lgkmcnt(0)
            s_barrier
            ds_read_b128 v[70:73], v68
            v_min_u32 v53, 47, v46
            v_lshlrev_b32 v53, 2, v53
            s_mul_i32 s{S_T0}, s{S_WAVE}, 192
            s_add_u32 s{S_T0}, s{S_T0}, {SUMS}
            v_add_u32 v53, s{S_T0}, v53
            v_add_f32 v70, v70, v71
            v_add_f32 v72, v72, v73
            v_add_f32 v70, v70, v72
            v_mov_b32 v71, {f32(1e-6)}
            v_fmac_f32 v71, {f32(1 / 384)}, v70
            v_rcp_f32 v71, v71
            v_mul_f32 v64, v64, v{V_G}
            v_mul_f32 v65, v65, v{V_G+1}
            v_fma_f32 v64, v64, v71, 1.0
            v_fma_f32 v65, v65, v71, 1.0
            v_mul_f32 v64, {f32(1 / CS)}, v64
            v_mul_f32 v65, {f32(1 / CS)}, v65
            v_cvt_pk_f16_f32 v64, v64, v65
            ds_write_b32 v53, v64
            s_waitcnt lgkmcnt(0)
        """)
        for cl in range(3):
            for ks in range(2):
                for jh in range(2):
                    s(f"ds_read_b64 {v(102 + 4*(cl*2+ks) + 2*jh, 2)}, v51 offset:{2 * (32*cl + 16*ks + 8*jh)}")
        s(f"s_mul_i32 s{S_T0}, s{S_WAVE}, 18")
        for f in range(18):
            for t in range(4):
                s(f"v_pk_mul_f16 v{160 + 4*f + t}, v{160 + 4*f + t}, v{102 + 4*(f//3) + t}")
            s(f"""
                s_add_u32 s{S_T1}, s{S_T0}, {f}
                s_cmp_ge_u32 s{S_T1}, 21
                s_cselect_b32 s{S_T2}, {100096 - 21 * 1024 - 71680}, 0
                s_add_u32 s{S_T1}, s{S_T1}, 70
                s_lshl_b32 s{S_T1}, s{S_T1}, 10
                s_add_u32 s{S_T1}, s{S_T1}, s{S_T2}
                v_add_u32 v{54 + (f & 1)}, s{S_T1}, v{V_LANE16}
                ds_write_b128 v{54 + (f & 1)}, {v(160 + 4*f, 4)}
            """)
        s("s_waitcnt lgkmcnt(0)\ns_barrier")
        self.stamp()

    def phase2(self):
        c = self.cfg
        YL = [8, 16]; YC = [24, 32, 56 - 0][:2]
        XB = [40, 48]
        def bufs(k): return (86 + 16 * (k % 2), 118 + 16 * (k % 2), YL[k % 2], YC[k % 2], V_B + 8 * (k % 2))
        f1, f2 = {}, {}
        cnt = dict(w1=0, w2=0)
        pend = []
        def g1(k, t):
            p, ch = divmod(k, 12); r = []
            acc = bufs(k)[t]
            for ks in range(6):
                if t == 0:
                    op, f1[ks] = self.w_read(w1_addr(6 * ch + ks), cnt["w1"] % 6, "D1"); cnt["w1"] += 1
                    r.append(op)
                cc = "0" if ks == 0 else v(acc, 16)
                r.append(Op(f"v_mfma_f32_32x32x16_bf16 {v(acc,16)}, {a(f1[ks],4)}, {a(A_LN + 48*p + 24*t + 4*ks,4)}, {cc}", stream="M1"))
            return r
        def xload(n):
            p, k = divmod(n, 6); blk, t = divmod(k, 2)
            return [Op(f"buffer_load_dwordx4 {v(XB[n % 2] + 4*q,4)}, v{V_CA}, {srd(S_X)}, s{S_ROW + 2*p + t} offen offset:{64*blk + 16*q} {c.xpol2}",
                       stream="DX", lat=c.x_lat) for q in range(2)]
        def g2(k, t):
            p, ch = divmod(k, 12); r = []
            y = bufs(k)[2 + t]
            base = V_Y + 48 * t
            if ch == 0:
                for blk in range(3):
                    r.append(Op(f"v_mfma_f32_32x32x16_bf16 {v(base + 16*blk,16)}, {a(A_BIAS + 2*blk,4)}, {a(A_ONES,4)}, 0", stream="M2"))
            for ks in range(2):
                for blk in range(3):
                    if t == 0:
                        op, f2[(ks, blk)] = self.w_read(w2_addr((ch * 2 + ks) * 3 + blk), 6 + cnt["w2"] % 6, "D2"); cnt["w2"] += 1
                        r.append(op)
                    acc = v(base + 16 * blk, 16)
                    r.append(Op(f"v_mfma_f32_32x32x16_f16 {acc}, {a(f2[(ks, blk)],4)}, {v(y + 4*ks,4)}, {acc}", stream="M2"))
            if ch % 4 == 1 + t:
                n = 6 * p + 2 * (ch // 4) + t
                r.append(Op(f"v_smfmac_f32_32x32x32_bf16 {v(base + 16*(ch//4),16)}, {a(A_ID,4)}, {v(XB[n % 2],8)}, v{V_IDX}", stream="M2"))
                if n + 2 < 24: r += xload(n + 2)
            if p > 0 and ch >= 1 and pend:
                first = next(o for o in r if o.kind == "m")
                first.tw.add(("pace", k, t))
                for _ in range(1 if t == 0 or ch == 1 else 0):
                    o = pend.pop(0); o.tr.add(("pace", k, t)); r.append(o)
            if ch == 11:
                assert not pend or t == 1
                st = lambda data, j: Op(f"buffer_store_dwordx4 {data}, v{V_CB}, {srd(S_OUT)}, s{S_ROW + 2*p + t} offen offset:{32 * j} {c.opol}", stream="DS")
                lag = []
                for j in range(24):
                    if p == 3:
                        r.append(Op(f"v_cvt_pk_bf16_f32 v{base + j}, v{base + 2*j}, v{base + 2*j + 1}", stream="VE"))
                        if j % 4 == 3: r.append(st(v(base + j - 3, 4), j // 4))
                    else:
                        tmp = 56 + j % 6
                        r.append(Op(f"v_cvt_pk_bf16_f32 v{tmp}, v{base + 2*j}, v{base + 2*j + 1}", stream="VE"))
                        lag.append(Op(f"v_accvgpr_write_b32 a{A_LN + 48*p + 24*t + j}, v{tmp}", stream="VE"))
                        if len(lag) > 2: r.append(lag.pop(0))
                        if j % 4 == 3: pend.append(st(a(A_LN + 48*p + 24*t + j - 3, 4), j // 4))
                r += lag
            return r
        ops = xload(0) + xload(1)
        ops += self.act_stream(48, 2, bufs, g1, g2)
        self.run(ops, ["M1", "M2"], ["VE", "VN", "VT"], ["D1", "D2", "DG", "DS", "DX"], [], "phase2", c.gap2)

    def dump_ln(self):
        s = self.seq
        s(f"""
            s_lshl_b32 s{S_T0}, s2, 2
            s_add_u32 s{S_T0}, s{S_T0}, s{S_WAVE}
            s_mul_i32 s{S_T0}, s{S_T0}, {192 * 256}
            s_add_u32 s{S_T0}, s{S_T0}, 0x100000
            v_lshrrev_b32 v46, 2, v{V_LANE16}
        """)
        for r in range(192):
            s(f"buffer_store_dword a{r}, v46, {srd(S_WS)}, s{S_T0} offen offset:{(r % 16) * 256}")
            if r % 16 == 15: s(f"s_add_u32 s{S_T0}, s{S_T0}, 4096\ns_waitcnt vmcnt(0)")

    def dump_stamps(self):
        s = self.seq
        s(f"""
            s_lshl_b32 s{S_T0}, s2, 2
            s_add_u32 s{S_T0}, s{S_T0}, s{S_WAVE}
            s_lshl_b32 s{S_T0}, s{S_T0}, 8
            s_add_u32 s{S_T0}, s{S_T0}, 0x20000
            v_lshrrev_b32 v46, 2, v{V_LANE16}
            buffer_store_dword v{self.cfg.stamp_reg}, v46, {srd(S_WS)}, s{S_T0} offen
        """)

    def build(self):
        c = self.cfg
        self.prologue()
        self.phase1()
        if c.dump: self.dump_ln()
        self.switch()
        self.phase2()
        if c.stamps:
            self.stamp()
            self.seq("s_waitcnt vmcnt(0)")
            self.stamp()
            self.dump_stamps()
        self.seq("L_last:\ns_endpgm")
        seq, t = self.em.out, self.em.mach.t
        if c.loop2:
            idx = [i for i, o in enumerate(seq) if o.mn == "v_mfma_f32_32x32x16_bf16" and o.stream == "M1"]
            idx = idx[len(idx) // 2:]
            i1, i2 = idx[144], idx[288]
            self.nstamp -= 2
            self.em = Emitter(); self.stamp(); pre = self.em.out
            self.em = Emitter()
            self.stamp(); self.seq("s_waitcnt vmcnt(0)"); self.stamp(); self.dump_stamps(); self.seq("L_last:\ns_endpgm")
            pre += [Op(f"s_mov_b32 s{S_CNT}, 4")]
            while sum(o.nbytes for o in pre) % 32: pre.append(Op("s_nop 0"))
            post = [Op(f"s_sub_u32 s{S_CNT}, s{S_CNT}, 1"), Op(f"s_cmp_lg_u32 s{S_CNT}, 0"), Op("s_cbranch_scc1 L_loop2"), Op("s_nop 15")]
            seq = seq[:i1] + pre + [Op("L_loop2:")] + seq[i1:i2] + post + self.em.out
        nb = sum(o.nbytes for o in seq)
        print(f"; total {len(seq)} instrs, {nb} bytes, model {t} cycles, waits {sum(o.kind == 'wait' for o in seq)}, nops {sum(o.cost // 4 for o in seq if o.kind == 'nop')}", file=sys.stderr)
        return seq, nb


HEADER = open("standalone__modern_conv_block_slak__vision.s.ref").read().split("; Override launch")[0]


def main():
    ap = argparse.ArgumentParser()
    ap.add_argument("-o", default="standalone__modern_conv_block_slak__vision.s")
    ap.add_argument("--lut1", default="LCLCLCLCLCLL")
    ap.add_argument("--nosched", action="store_true")
    ap.add_argument("--trace", action="store_true")
    ap.add_argument("--abl", default="")
    ap.add_argument("--fine", type=int, default=0)
    ap.add_argument("--loop2", action="store_true")
    ap.add_argument("--ldslat", type=int, default=110)
    ap.add_argument("--mlat", type=int, default=56)
    ap.add_argument("--cover", type=int, default=0)
    ap.add_argument("--preread", default="")
    ap.add_argument("--jit", type=int, default=16384)
    ap.add_argument("--pf0", type=int, default=4)
    ap.add_argument("--dump", action="store_true")
    ap.add_argument("--stamps", action="store_true")
    ap.add_argument("--noprefetch", dest="prefetch", action="store_false")
    ap.add_argument("--xpol", default="")
    ap.add_argument("--xpol2", default="")
    ap.add_argument("--opol", default="")
    ap.add_argument("--gap1", type=int, default=32)
    ap.add_argument("--gap2", type=int, default=32)
    ap.add_argument("--ad_lead", type=int, default=6)
    ap.add_argument("--dlimit", type=int, default=2)
    ap.add_argument("--dma_lat", type=int, default=3500)
    ap.add_argument("--x_lat", type=int, default=2500)
    cfg = ap.parse_args()
    cfg.ws_bytes = 0x4000000 if cfg.dump else (0x80000 if cfg.stamps else 0x20000)
    cfg.stamp_reg = 150
    import asmlib
    asmlib.Machine.LDS_LAT = cfg.ldslat; asmlib.Machine.MLAT = cfg.mlat
    g = Gen(cfg)
    seq, nb = g.build()
    body = "\n".join(o.text for o in seq).replace("CODE_BYTES", str(nb - 0))
    txt = HEADER + f"""; @launch grid=(256,1,1) block=(256,1,1) lds={LDS_TOTAL}
.amdgcn_target "amdgcn-amd-amdhsa--gfx950"
.text
.globl {NAME}
.p2align 8
.type {NAME},@function
{NAME}:
{body}
.section .rodata,"a"
.p2align 6
.amdhsa_kernel {NAME}
  .amdhsa_next_free_vgpr 512
  .amdhsa_next_free_sgpr 102
  .amdhsa_accum_offset 256
  .amdhsa_group_segment_fixed_size 0
  .amdhsa_kernarg_size 72
  .amdhsa_user_sgpr_count 2
  .amdhsa_user_sgpr_kernarg_segment_ptr 1
  .amdhsa_system_sgpr_workgroup_id_x 1
  .amdhsa_float_denorm_mode_32 3
.end_amdhsa_kernel
"""
    open(cfg.o, "w").write(txt)


if __name__ == "__main__":
    main()
```
